```python
import torch

def _softmax(x, axis=-1):
    return torch.softmax(x, dim=axis)
def _gelu(x):
    return torch.nn.functional.gelu(x, approximate="tanh")
def _silu(x):
    return torch.nn.functional.silu(x)
def _sigmoid(x):
    return torch.sigmoid(x)
def _layernorm(x, axis=-1, eps=1e-5):
    m = x.mean(dim=axis, keepdim=True)
    v = x.var(dim=axis, keepdim=True, unbiased=False)
    return (x - m) / torch.sqrt(v + eps)
def _scatter_add(tgt, idx, src, axis=0):
    return tgt.clone().index_add_(axis, idx, src)
def _segment_sum(src, seg, n):
    out = torch.zeros((n,) + src.shape[1:], dtype=src.dtype)
    return out.index_add_(0, seg, src)
def _pad(x, pw):
    flat = tuple(v for pair in reversed(pw) for v in pair)
    return torch.nn.functional.pad(x, flat)

kernel_name = 'sequential_preLN__spectral_fnet__swiglu_ffn__prompt'

def setup_inputs():

    _w = (lambda a: (lambda t: t.to(torch.bfloat16) if t.is_floating_point() else t)(torch.as_tensor(a)))
    def _A_setup():
        B, S, D = 1, 2048, 576
        ns = torch.arange(S)[:, None] * torch.arange(S)[None, :]
        nd = torch.arange(D)[:, None] * torch.arange(D)[None, :]
        Ws_re = torch.cos(-2.0 * torch.pi * ns / S).to(float)
        Ws_im = torch.sin(-2.0 * torch.pi * ns / S).to(float)
        Wd_re = torch.cos(-2.0 * torch.pi * nd / D).to(float)
        Wd_im = torch.sin(-2.0 * torch.pi * nd / D).to(float)
        return {
            "x": _w((lambda *s: torch.randn(*s, dtype=torch.bfloat16) * 0.05)(B, S, D)),
            "dft_seq_re": _w(Ws_re),
            "dft_seq_im": _w(Ws_im),
            "dft_hid_re": _w(Wd_re),
            "dft_hid_im": _w(Wd_im),
        }
    _A_in = _A_setup()

    def _B_setup():
        B, S, D, F = 1, 2048, 576, 4608
        return {
            "x": _w((lambda *s: torch.randn(*s, dtype=torch.bfloat16) * 0.05)(B, S, D)),
            "w_gate": _w((lambda *s: torch.randn(*s, dtype=torch.bfloat16) * 0.2)(D, F)),
            "w_up": _w((lambda *s: torch.randn(*s, dtype=torch.bfloat16) * 0.2)(D, F)),
            "w_down": _w((lambda *s: torch.randn(*s, dtype=torch.bfloat16) * 0.2)(F, D)),
        }
    _B_in = _B_setup()

    return {
        "A_x": _A_in["x"],
        "A_dft_seq_re": _A_in["dft_seq_re"],
        "A_dft_seq_im": _A_in["dft_seq_im"],
        "A_dft_hid_re": _A_in["dft_hid_re"],
        "A_dft_hid_im": _A_in["dft_hid_im"],
        "B_x": _B_in["x"],
        "B_w_gate": _B_in["w_gate"],
        "B_w_up": _B_in["w_up"],
        "B_w_down": _B_in["w_down"],
    }

def reference(A_x, A_dft_seq_re, A_dft_seq_im, A_dft_hid_re, A_dft_hid_im, B_x, B_w_gate, B_w_up, B_w_down):
    def _A_ref(x, dft_seq_re, dft_seq_im, dft_hid_re, dft_hid_im):
        a = torch.einsum("bsd,ed->bse", x, dft_hid_re)
        b = torch.einsum("bsd,ed->bse", x, dft_hid_im)
        y = torch.einsum("ts,bse->bte", dft_seq_re, a) - torch.einsum("ts,bse->bte", dft_seq_im, b)
        return y

    def _B_ref(x, w_gate, w_up, w_down):
        g = _silu(x @ w_gate)
        u = x @ w_up
        return (g * u) @ w_down

    x = A_x
    h = x + _A_ref(_layernorm(x, axis=-1), A_dft_seq_re, A_dft_seq_im, A_dft_hid_re, A_dft_hid_im)
    h2 = h + _B_ref(_layernorm(h, axis=-1), B_w_gate, B_w_up, B_w_down)
    return h2
```

```python
NAME='sequential_preLN__spectral_fnet__swiglu_ffn__prompt'
STAMP_OFF=240<<20
class Asm:
    def __init__(self):
        self.lines=[]; self.launch=[]; self.descs=[]; self.nlabel=0
    def __call__(self, s):
        for l in s.split('\n'):
            self.lines.append('    '+l.strip() if l.strip() and not l.strip().endswith(':') else l.strip())
    def label(self, base='L'):
        self.nlabel+=1; return f'{base}_{self.nlabel}'
    def begin(self, name):
        self.lines+= ['.text', f'.globl {name}', '.p2align 8', f'.type {name},@function', f'{name}:']
    def end(self, name, grid, block, lds, vgpr, sgpr=100, accum=None, wgy=False):
        if accum is None: accum=(vgpr+3)//4*4
        accum=min(accum,256)
        self.launch.append(f'; @launch kernel={name} grid=({grid[0]},{grid[1]},{grid[2]}) block=({block},1,1) lds={lds}')
        d=['.section .rodata,"a"','.p2align 6',f'.amdhsa_kernel {name}',
           f'  .amdhsa_next_free_vgpr {vgpr}',f'  .amdhsa_next_free_sgpr {sgpr}',f'  .amdhsa_accum_offset {accum}',
           '  .amdhsa_group_segment_fixed_size 0','  .amdhsa_kernarg_size 96','  .amdhsa_user_sgpr_count 2',
           '  .amdhsa_user_sgpr_kernarg_segment_ptr 1','  .amdhsa_system_sgpr_workgroup_id_x 1']
        if wgy: d.append('  .amdhsa_system_sgpr_workgroup_id_y 1')
        d+=['  .amdhsa_float_denorm_mode_32 3','  .amdhsa_float_denorm_mode_16_64 3','.end_amdhsa_kernel']
        self.descs+=d
    def relaunch(self, name, grid, block, lds):
        self.launch.append(f'; @launch kernel={name} grid=({grid[0]},{grid[1]},{grid[2]}) block=({block},1,1) lds={lds}')
    def srd(self, d, base, nbytes, off=0):
        if off:
            self(f's_add_u32 s{d}, s{base}, {off:#x}\ns_addc_u32 s{d+1}, s{base+1}, 0')
        else:
            self(f's_mov_b32 s{d}, s{base}\ns_mov_b32 s{d+1}, s{base+1}')
        self(f's_mov_b32 s{d+2}, {nbytes:#x}\ns_mov_b32 s{d+3}, 0x20000')
    def stamp_start(self):
        self('s_memrealtime s[90:91]\ns_memtime s[92:93]')
    def stamp_end(self, kidx, wgreg='s2', tid='v0', tmp=0):
        L=self.label('Lst')
        t=tmp
        self(f'''s_waitcnt vmcnt(0) lgkmcnt(0)
        s_barrier
        s_memrealtime s[94:95]
        s_memtime s[96:97]
        s_load_dwordx2 s[84:85], s[0:1], 88
        s_waitcnt lgkmcnt(0)
        s_add_u32 s80, s84, {STAMP_OFF+kidx*65536*4:#x}
        s_addc_u32 s81, s85, 0
        s_mov_b32 s82, 0x40000
        s_mov_b32 s83, 0x20000
        s_lshl_b32 s86, {wgreg}, 5
        v_cmp_eq_u32 vcc, 0, {tid}
        s_and_saveexec_b64 s[88:89], vcc
        s_cbranch_execz {L}
        v_mov_b32 v{t+8}, s86
        v_mov_b32 v{t}, s90
        v_mov_b32 v{t+1}, s91
        v_mov_b32 v{t+2}, s92
        v_mov_b32 v{t+3}, s93
        v_mov_b32 v{t+4}, s94
        v_mov_b32 v{t+5}, s95
        v_mov_b32 v{t+6}, s96
        v_mov_b32 v{t+7}, s97
        buffer_store_dwordx4 v[{t}:{t+3}], v{t+8}, s[80:83], 0 offen
        buffer_store_dwordx4 v[{t+4}:{t+7}], v{t+8}, s[80:83], 0 offen offset:16
        {L}:
        s_mov_b64 exec, s[88:89]''')
    def tp(self, i):
        self(f's_memtime s[{54+2*i}:{55+2*i}]')
    def trace_end(self, kidx, n, wgreg='s2', tid='v0', tmp=0):
        t=tmp
        self(f'''s_waitcnt vmcnt(0) lgkmcnt(0)
        s_load_dwordx2 s[84:85], s[0:1], 88
        v_mov_b32 v{t}, 0
        s_waitcnt lgkmcnt(0)
        s_add_u32 s80, s84, {STAMP_OFF+(4<<20)+kidx*(1<<20):#x}
        s_addc_u32 s81, s85, 0
        s_mov_b32 s82, 0x100000
        s_mov_b32 s83, 0x20000''')
        for i in range(n):
            self(f's_sub_u32 s86, s{54+2*i}, s92\ns_nop 0\nv_writelane_b32 v{t}, s86, {i}')
        self(f'''v_lshrrev_b32 v{t+1}, 6, {tid}
        v_lshlrev_b32 v{t+1}, 6, v{t+1}
        v_and_b32 v{t+2}, 63, {tid}
        v_lshl_add_u32 v{t+1}, v{t+2}, 2, v{t+1}
        s_lshl_b32 s86, {wgreg}, 10
        s_mov_b64 exec, 0xffff
        buffer_store_dword v{t}, v{t+1}, s[80:83], s86 offen
        s_mov_b64 exec, -1''')
    def text(self, header=''):
        return header+'\n'.join(self.launch)+'\n.amdgcn_target "amdgcn-amd-amdhsa--gfx950"\n'+'\n'.join(self.lines)+'\n'+'\n'.join(self.descs)+'\n'
```

```python
import sys, os
sys.path.insert(0, os.path.dirname(os.path.abspath(__file__)))
from asmlib import *

STAMPS = os.environ.get('STAMPS','0')=='1'
TRACE = os.environ.get('TRACE','0')=='1'
X = set(os.environ.get('X','').split(','))
W1F_OFF=0x0000000; W1F_SZ=288*36864
W2F_OFF=0x0C00000; W2F_SZ=16*18*18432
RAB_OFF=0x1200000; RAB_SZ=64*32*1152
HNF_OFF=0x1600000; HNF_SZ=64*36864
H_OFF  =0x1A00000; H_SZ=2048*1152
GF_OFF =0x2000000; GF_SZ=128*144*1024
PART_OFF=0x4000000; PART_SZ=4*64*8*4608
XSZ=2048*1152
KA_X=0; KA_CS=8; KA_SS=16; KA_CD=24; KA_SD=32; KA_WG=48; KA_WU=56; KA_WD=64; KA_OUT=72; KA_DBG=80; KA_WS=88

def vr(b,n=4): return f'v[{b}:{b+n-1}]'
def sr(b,n=4): return f's[{b}:{b+n-1}]'

def prep_body(a, U, done):
    Lw2=a.label('Lw2')
    a(f'''s_load_dwordx4 s[24:27], s[0:1], {KA_WG}
    s_load_dwordx2 s[28:29], s[0:1], {KA_WD}
    s_load_dwordx2 s[30:31], s[0:1], {KA_WS}
    s_mul_i32 s22, s20, {U}
    v_lshrrev_b32 v2, 3, v1
    v_and_b32 v3, 7, v1
    v_lshlrev_b32 v4, 4, v1
    s_cmp_ge_u32 s22, 3888
    s_cbranch_scc1 {done}
    s_cmp_ge_u32 s22, 2592
    s_cbranch_scc1 {Lw2}''')
    a(f'''v_lshrrev_b32 v5, 1, v2
    v_and_b32 v5, 1, v5
    v_lshlrev_b32 v5, 1, v5
    v_xor_b32 v5, v5, v3
    v_lshlrev_b32 v5, 4, v5
    v_mul_u32_u24 v6, 9216, v2
    v_add_u32 v5, v5, v6
    v_xor_b32 v6, 64, v5
    s_waitcnt lgkmcnt(0)''')
    a.srd(32,24,576*9216); a.srd(36,26,576*9216); a.srd(40,30,W1F_SZ,W1F_OFF)
    a(f'''s_mul_i32 s44, s22, 1821
    s_lshr_b32 s44, s44, 16
    s_mul_i32 s45, s44, 36
    s_sub_u32 s45, s22, s45
    s_mul_i32 s46, s45, {16*9216}
    s_lshl_b32 s47, s44, 7
    s_add_u32 s46, s46, s47
    s_mov_b32 s48, s21''')
    for u in range(U):
        for m in range(2):
            for p in range(2):
                a(f'''s_mov_b32 m0, s48
                s_add_u32 s49, s46, {(u*16+p*8)*9216}
                s_add_u32 s48, s48, 1024
                buffer_load_dwordx4 v{5+m}, {sr(32+4*m)}, s49 offen lds''')
    a(f'''v_lshrrev_b32 v7, 4, v1
    v_and_b32 v8, 1, v7
    v_lshrrev_b32 v9, 1, v7
    v_and_b32 v10, 15, v1
    v_lshrrev_b32 v11, 2, v10
    v_lshl_add_u32 v11, v9, 3, v11
    v_lshlrev_b32 v11, 7, v11
    v_lshl_add_u32 v11, v8, 11, v11
    v_bfe_u32 v12, v10, 3, 1
    v_lshl_or_b32 v12, v8, 1, v12
    v_lshl_add_u32 v11, v12, 5, v11
    v_and_b32 v12, 1, v10
    v_lshlrev_b32 v12, 4, v12
    v_add_u32 v11, v11, v12
    v_bfe_u32 v12, v10, 1, 1
    v_lshl_add_u32 v11, v12, 3, v11
    v_add_u32 v11, s21, v11
    v_xor_b32 v12, 32, v11
    v_xor_b32 v13, 64, v11
    v_xor_b32 v14, 96, v11
    s_mul_i32 s50, s44, {4*36864}
    s_lshl_b32 s51, s45, 10
    s_add_u32 s50, s50, s51''')
    for u in range(U):
        a(f's_waitcnt vmcnt({4*(U-1-u)+4*u})')
        for cc in range(4):
            d=16+(u*4+cc)*4
            a(f'ds_read_b64_tr_b16 v[{d}:{d+1}], v{11+cc} offset:{u*4096}')
            a(f'ds_read_b64_tr_b16 v[{d+2}:{d+3}], v{11+cc} offset:{u*4096+512}')
        for cc in range(4):
            d=16+(u*4+cc)*4
            a(f's_add_u32 s51, s50, {cc*36864+u*1024}')
            a(f's_waitcnt lgkmcnt({6-2*cc})')
            a(f'buffer_store_dwordx4 {vr(d)}, v4, s[40:43], s51 offen')
    a(f's_branch {done}')
    a(f'{Lw2}:')
    a(f'''v_lshrrev_b32 v5, 1, v2
    v_and_b32 v5, 1, v5
    v_lshlrev_b32 v5, 2, v5
    v_xor_b32 v5, v5, v3
    v_lshlrev_b32 v5, 4, v5
    v_mul_u32_u24 v6, 1152, v2
    v_add_u32 v5, v5, v6
    v_xor_b32 v6, 32, v5
    s_waitcnt lgkmcnt(0)''')
    a.srd(32,28,4608*1152); a.srd(40,30,W2F_SZ,W2F_OFF)
    a(f's_sub_u32 s22, s22, 2592\ns_mov_b32 s48, s21')
    for u in range(U):
        ks=52+2*u; L=53+2*u
        a(f'''s_add_u32 s44, s22, {u}
        s_mul_i32 s{ks}, s44, 7282
        s_lshr_b32 s{ks}, s{ks}, 16
        s_mul_i32 s45, s{ks}, 9
        s_sub_u32 s{L}, s44, s45
        s_mul_i32 s46, s{ks}, {32*1152}
        s_lshl_b32 s47, s{L}, 7
        s_add_u32 s46, s46, s47''')
        for p in range(4):
            a(f'''s_mov_b32 m0, s48
            s_add_u32 s49, s46, {p*8*1152}
            s_add_u32 s48, s48, 1024
            buffer_load_dwordx4 v{5+(p&1)}, s[32:35], s49 offen lds''')
    a(f'''v_lshrrev_b32 v7, 4, v1
    v_and_b32 v10, 15, v1
    v_lshrrev_b32 v11, 2, v10
    v_lshl_add_u32 v11, v7, 3, v11
    v_lshlrev_b32 v11, 7, v11
    v_add_u32 v11, s21, v11
    v_and_b32 v8, 1, v7
    v_bfe_u32 v12, v10, 3, 1
    v_lshl_or_b32 v8, v12, 1, v8
    v_lshlrev_b32 v8, 5, v8
    v_and_b32 v9, 3, v10''')
    for u in range(U):
        ks=52+2*u; L=53+2*u
        a(f'''s_mul_i32 s44, s{ks}, 1821
        s_lshr_b32 s44, s44, 16
        s_mul_i32 s45, s44, 36
        s_sub_u32 s45, s{ks}, s45
        s_mul_i32 s50, s44, {4*18*18432}
        s_cmp_ge_u32 s45, 18
        s_cselect_b32 s46, 18, 0
        s_cselect_b32 s47, 9216, 0
        s_sub_u32 s45, s45, s46
        s_mul_i32 s45, s45, 18432
        s_add_u32 s50, s50, s45
        s_add_u32 s50, s50, s47''')
        a(f's_waitcnt vmcnt({4*(U-1-u)+4*u})')
        for b in range(4):
            d=16+(u*4+b)*4
            sing=2 if b<2 else 6
            a(f'''s_cmp_eq_u32 s{L}, {sing}
            s_cselect_b32 s44, 8, 16
            s_cselect_b32 s45, {32*b}, {64*(b>>1)+8*(b&1)}
            v_mov_b32 v13, s45
            v_mad_u32_u24 v13, v9, s44, v13
            v_xor_b32 v13, v13, v8
            v_add_u32 v13, v13, v11
            ds_read_b64_tr_b16 v[{d}:{d+1}], v13 offset:{u*4096}
            ds_read_b64_tr_b16 v[{d+2}:{d+3}], v13 offset:{u*4096+512}''')
        for b in range(4):
            d=16+(u*4+b)*4
            a(f'''s_lshl_b32 s44, s{L}, 2
            s_add_u32 s44, s44, {b}
            s_mul_i32 s45, s44, 57
            s_lshr_b32 s45, s45, 9
            s_mul_i32 s46, s45, 9
            s_sub_u32 s46, s44, s46
            s_and_b32 s47, s45, 1
            s_sub_u32 s46, s46, s47
            s_cmp_lt_i32 s46, 0
            s_cselect_b32 s46, 8, s46
            s_mul_i32 s45, s45, {18*18432}
            s_lshl_b32 s46, s46, 10
            s_add_u32 s51, s50, s45
            s_add_u32 s51, s51, s46
            s_waitcnt lgkmcnt({6-2*b})
            buffer_store_dwordx4 {vr(d)}, v4, s[40:43], s51 offen''')
    a(f's_branch {done}')

def k_prep(a, kidx):
    name='prep_kernel'; NW=6; U=3; NWG=3888//(NW*U)
    a.begin(name)
    a(f's_cmp_ge_u32 s2, {NWG}\ns_cbranch_scc1 Lend_{name}')
    if STAMPS: a.stamp_start()
    a(f'''v_lshrrev_b32 v2, 6, v0
    v_and_b32 v1, 63, v0
    s_nop 0
    v_readfirstlane_b32 s23, v2
    s_nop 3
    s_mul_i32 s20, s2, {NW}
    s_add_u32 s20, s20, s23
    s_mul_i32 s21, s23, {U*4096}''')
    prep_body(a,U,f'Ldone_{name}')
    a(f'Ldone_{name}:')
    if STAMPS: a.stamp_end(kidx,tmp=16)
    a(f'Lend_{name}:\ns_endpgm')
    a.end(name,(NWG,1,1),NW*64,NW*U*4096,64)
    return NWG

def k_gemm1(a, kidx):
    name='gemm1_kernel'
    HB=16; ACC=[160,176]; AR=192; R=6; T=216
    a.begin(name)
    a(f's_cmp_ge_u32 s2, 256\ns_cbranch_scc1 Lend_{name}')
    if STAMPS: a.stamp_start()
    a(f'''s_load_dwordx2 s[4:5], s[0:1], {KA_WS}
    v_lshrrev_b32 v2, 6, v0
    v_and_b32 v1, 63, v0
    v_lshlrev_b32 v3, 4, v1
    v_readfirstlane_b32 s6, v2
    s_and_b32 s7, s2, 7
    s_lshr_b32 s20, s2, 3
    s_and_b32 s21, s7, 1
    s_lshl_b32 s21, s21, 2
    s_and_b32 s22, s20, 3
    s_add_u32 s21, s21, s22
    s_lshr_b32 s22, s7, 1
    s_lshl_b32 s22, s22, 3
    s_lshr_b32 s23, s20, 2
    s_add_u32 s22, s22, s23
    s_lshl_b32 s21, s21, 3
    s_add_u32 s21, s21, s6
    s_mul_i32 s23, s22, {9*36864}
    s_mul_i32 s24, s21, 36864
    s_mul_i32 s25, s6, 4608
    s_waitcnt lgkmcnt(0)''')
    a(f'''s_add_u32 s8, s4, s23
    s_addc_u32 s9, s5, 0
    s_mov_b32 s10, {9*36864}
    s_mov_b32 s11, 0x20000''')
    a.srd(12,4,HNF_SZ,HNF_OFF); a.srd(16,4,GF_SZ,GF_OFF)
    a(f'''v_add_u32 v4, s25, v3
    s_mov_b32 s26, s25''')
    def dma():
        return ['s_mov_b32 m0, s26\ns_mov_b32 exec_hi, 0\nbuffer_load_dwordx4 v4, s[8:11], 0 offen lds\ns_mov_b32 exec_hi, -1']+\
               [f'buffer_load_dwordx4 v4, s[8:11], 0 offen offset:{512+1024*p} lds' for p in range(4)]+\
               [f'v_add_u32 v4, {36864}, v4\ns_add_u32 s26, s26, 36864\ns_cmp_ge_u32 s26, {4*36864}\ns_cselect_b32 s26, s25, s26']
    def hload(k):
        return f's_add_u32 s27, s24, {(k>>2)*4096}\nbuffer_load_dwordx4 {vr(HB+4*k)}, v3, s[12:15], s27 offen offset:{(k&3)*1024}'
    for x in dma(): a(x)
    for k in range(18): a(hload(k))
    for x in dma(): a(x)
    for k in range(18,36): a(hload(k))
    for x in dma(): a(x)
    for x in dma(): a(x)
    a(f'''v_bfe_u32 v5, v1, 4, 1
    v_mul_u32_u24 v5, {144*1024}, v5
    v_and_b32 v6, 15, v1
    v_lshrrev_b32 v7, 5, v1
    v_lshl_add_u32 v6, v7, 4, v6
    v_lshl_add_u32 v5, v6, 4, v5
    s_mul_i32 s28, s21, {2*144*1024}
    s_mul_i32 s29, s22, {9*512}
    s_add_u32 s28, s28, s29
    s_mov_b32 s30, 0xbfb8aa3b
    v_mov_b32 v8, v3
    v_add_u32 v9, 36864, v3
    s_mov_b32 s31, 36864''')
    def epilogue(acc):
        ops=[]
        for j in range(8): ops.append(f'v_mul_f32 v{T+j}, s30, v{acc+j}')
        for j in range(8): ops.append(f'v_exp_f32 v{T+j}, v{T+j}')
        for j in range(8): ops.append(f'v_mul_f32 v{T+8+j}, v{acc+j}, v{acc+8+j}')
        for j in range(8): ops.append(f'v_add_f32 v{T+j}, 1.0, v{T+j}')
        for j in range(8): ops.append(f'v_rcp_f32 v{T+j}, v{T+j}')
        for j in range(8): ops.append(f'v_mul_f32 v{T+8+j}, v{T+8+j}, v{T+j}')
        for j in range(4): ops.append(f'v_cvt_pk_bf16_f32 v{T+16+j}, v{T+8+2*j}, v{T+9+2*j}')
        ops.append(f'buffer_store_dwordx4 {vr(T+16)}, v5, s[16:19], s28 offen\ns_add_u32 s28, s28, 512')
        return ops
    def body(acc, prev, first=False, last=False):
        fill={k:[] for k in range(36)}
        if not first:
            fill[0].append('s_waitcnt vmcnt(5)\ns_barrier')
            d=dma() if 'nodma' not in X else []
            for i,x in enumerate(d): fill[1+i].append(x)
            ep=epilogue(prev) if 'noep' not in X else ['s_nop 0']
            n=len(ep); s0=5; ns=30
            for i,x in enumerate(ep): fill[s0+i*ns//n].append(x)
        else:
            fill[27].append('s_barrier')
        for k in range(36):
            if first:
                after = (35-k) + 10 + (5 if k<18 else 0)
                a(f's_waitcnt vmcnt({after}) lgkmcnt({R-1})')
            else:
                a(f's_waitcnt lgkmcnt({R-1})')
            c = '0' if k==0 else vr(acc,16)
            a(f'v_mfma_f32_32x32x16_bf16 {vr(acc,16)}, {vr(AR+4*(k%R))}, {vr(HB+4*k)}, {c}')
            kn=k+R
            if 'nolds' in X: pass
            elif kn<36: a(f'ds_read_b128 {vr(AR+4*(k%R))}, v8 offset:{kn*1024}')
            else:     a(f'ds_read_b128 {vr(AR+4*(k%R))}, v9 offset:{(kn-36)*1024}')
            for x in fill[k]: a(x)
        a(f'''v_mov_b32 v8, v9
        s_add_u32 s31, s31, 36864
        s_cmp_ge_u32 s31, {4*36864}
        s_cselect_b32 s31, 0, s31
        v_add_u32 v9, s31, v3''')
    if TRACE: a.tp(0)
    a('s_waitcnt vmcnt(51)\ns_barrier')
    if TRACE: a.tp(1)
    for k in range(R): a(f'ds_read_b128 {vr(AR+4*k)}, v8 offset:{k*1024}')
    body(ACC[0],None,first=True)
    if TRACE:
        for it in range(4):
            a.tp(2+2*it); body(ACC[1],ACC[0]); a.tp(3+2*it); body(ACC[0],ACC[1])
        a.tp(10)
    else:
        a('s_mov_b32 s32, 0')
        a(f'Lloop_{name}:')
        body(ACC[1],ACC[0]); body(ACC[0],ACC[1])
        a(f's_add_u32 s32, s32, 1\ns_cmp_lt_u32 s32, 4\ns_cbranch_scc1 Lloop_{name}')
    a('s_nop 7\ns_nop 3')
    ep=epilogue(ACC[0])
    for x in ep: a(x)
    if TRACE:
        a.tp(11); a('s_waitcnt vmcnt(0)'); a.tp(12); a.trace_end(kidx,13,tmp=16)
    if STAMPS: a.stamp_end(kidx,tmp=16)
    a(f'Lend_{name}:\ns_endpgm')
    a.end(name,(256,1,1),512,4*36864,240)
    return 256

def k_gemm2(a, kidx):
    name='gemm2_kernel'
    GB=16; ACC=160; AR=232; R=6
    a.begin(name)
    a(f's_cmp_ge_u32 s2, 256\ns_cbranch_scc1 Lend_{name}')
    if STAMPS: a.stamp_start()
    a(f'''s_load_dwordx2 s[4:5], s[0:1], {KA_WS}
    v_lshrrev_b32 v2, 6, v0
    v_and_b32 v1, 63, v0
    v_lshlrev_b32 v3, 4, v1
    v_readfirstlane_b32 s6, v2
    s_and_b32 s7, s2, 7
    s_lshr_b32 s20, s2, 3
    s_and_b32 s21, s7, 1
    s_lshl_b32 s21, s21, 3
    s_and_b32 s22, s20, 7
    s_add_u32 s21, s21, s22
    s_lshr_b32 s22, s7, 1
    s_lshr_b32 s23, s20, 3
    s_and_b32 s33, s6, 3
    s_lshr_b32 s34, s6, 2
    s_lshl_b32 s24, s22, 2
    s_add_u32 s24, s24, s23
    s_mul_i32 s24, s24, {18*18432}
    s_mul_i32 s25, s6, 4608
    s_lshl_b32 s35, s21, 2
    s_add_u32 s35, s35, s33
    s_mul_i32 s27, s35, {2*144*1024}
    s_mul_i32 s28, s22, {36*1024}
    s_add_u32 s27, s27, s28
    s_mul_i32 s28, s34, {18*1024}
    s_add_u32 s27, s27, s28
    s_waitcnt lgkmcnt(0)''')
    a(f'''s_add_u32 s8, s4, {W2F_OFF:#x}
    s_addc_u32 s9, s5, 0
    s_add_u32 s8, s8, s24
    s_addc_u32 s9, s9, 0
    s_mov_b32 s10, {18*18432}
    s_mov_b32 s11, 0x20000''')
    a.srd(12,4,GF_SZ,GF_OFF); a.srd(16,4,PART_SZ,PART_OFF)
    a(f'''v_add_u32 v4, s25, v3
    v_add_u32 v5, {144*1024}, v3
    s_mul_i32 s29, s34, 9216
    v_add_u32 v6, s29, v3
    v_add_u32 v7, {2*36864}, v6''')
    def loads(i):
        if i>=9: return []
        l=[f's_add_u32 m0, s25, {(i%4)*36864}\ns_mov_b32 s30, {i*36864}\ns_mov_b32 exec_hi, 0\nbuffer_load_dwordx4 v4, s[8:11], s30 offen lds\ns_mov_b32 exec_hi, -1']
        l+=[f'buffer_load_dwordx4 v4, s[8:11], s30 offen offset:{512+1024*p} lds' for p in range(4)]
        for s in range(2):
            for m in range(2):
                pre=f's_add_u32 s31, s27, {2*i*1024}\n' if (s==0 and m==0) else ''
                l.append(pre+f'buffer_load_dwordx4 {vr(GB+16*i+8*s+4*m)}, v{3 if m==0 else 5}, s[12:15], s31 offen offset:{s*1024}')
        return l
    def aread(n):
        i=n//18; f=n%18; s=f//9; t=f%9
        slot=i%4
        return f'ds_read_b128 {vr(AR+4*(n%R))}, v{6+(slot>>1)} offset:{(slot&1)*36864+s*18432+t*1024}'
    for i in range(4):
        for x in loads(i): a(x)
    a('s_waitcnt vmcnt(27)\ns_barrier')
    for n in range(R): a(aread(n))
    BP=8
    for i in range(9):
        fill={f:[] for f in range(18)}
        if i<8:
            last=min(max(3,i+2),8)
            N=4+9*(last-(i+1))
            fill[BP].append(f's_waitcnt vmcnt({N})\ns_barrier')
            if i>=1:
                for q,x in enumerate(loads(i+3)): fill[min(BP+1+q,17)].append(x)
        for f in range(18):
            n=18*i+f; s=f//9; t=f%9
            rem=min(R-1,161-n)
            w=f's_waitcnt lgkmcnt({rem})'
            if f==0 and i>0:
                last=min(max(3,i+2),8)
                w=f's_waitcnt vmcnt({9*(last-i)}) lgkmcnt({rem})'
            a(w)
            for m in range(2):
                acc=ACC+8*t+4*m
                c='0' if (i==0 and s==0) else vr(acc)
                a(f'v_mfma_f32_16x16x32_bf16 {vr(acc)}, {vr(AR+4*(n%R))}, {vr(GB+16*i+8*s+4*m)}, {c}')
            if n+R<162: a(aread(n+R))
            for x in fill[f]: a(x)
    a('s_barrier\ns_nop 7')
    Lk=a.label('Lkh'); Lj=a.label('Lkj')
    a(f'''s_mul_i32 s36, s6, 9216
    v_add_u32 v8, s36, v3
    s_xor_b32 s37, s6, 4
    s_mul_i32 s37, s37, 9216
    v_add_u32 v9, s37, v3
    s_cmp_eq_u32 s34, 0
    s_cbranch_scc0 {Lk}''')
    for t in range(9): a(f'ds_write_b128 v8, {vr(ACC+8*t+4)} offset:{t*1024}')
    a(f's_branch {Lj}\n{Lk}:')
    for t in range(9): a(f'ds_write_b128 v8, {vr(ACC+8*t)} offset:{t*1024}')
    for t in range(9):
        for r in range(4): a(f'v_mov_b32 v{ACC+8*t+r}, v{ACC+8*t+4+r}')
    a(f'{Lj}:\ns_waitcnt lgkmcnt(0)\ns_barrier')
    for t in range(9): a(f'ds_read_b128 {vr(16+4*t)}, v9 offset:{t*1024}')
    a(f'''s_lshl_b32 s38, s22, 6
    s_lshl_b32 s39, s21, 2
    s_add_u32 s38, s38, s39
    s_add_u32 s38, s38, s23
    s_mul_i32 s38, s38, {8*4608}
    s_add_u32 s38, s38, s25
    v_lshlrev_b32 v10, 3, v1''')
    for t in range(9):
        a(f's_waitcnt lgkmcnt({8-t})')
        for r in range(4): a(f'v_add_f32 v{16+4*t+r}, v{16+4*t+r}, v{ACC+8*t+r}')
        a(f'v_cvt_pk_bf16_f32 v{64+2*t}, v{16+4*t}, v{17+4*t}\nv_cvt_pk_bf16_f32 v{65+2*t}, v{18+4*t}, v{19+4*t}')
        if t&1: a(f'buffer_store_dwordx4 {vr(64+2*(t-1))}, v3, s[16:19], s38 offen offset:{(t>>1)*1024}')
    a(f's_add_u32 s38, s38, 4096\nbuffer_store_dwordx2 v[80:81], v10, s[16:19], s38 offen')
    if STAMPS: a.stamp_end(kidx,tmp=16)
    a(f'Lend_{name}:\ns_endpgm')
    a.end(name,(256,1,1),512,4*36864,256)
    return 256

def k_reduce(a, kidx):
    name='reduce_kernel'
    a.begin(name)
    a(f's_cmp_ge_u32 s2, 256\ns_cbranch_scc1 Lend_{name}')
    if STAMPS: a.stamp_start()
    a(f'''s_load_dwordx2 s[4:5], s[0:1], {KA_WS}
    s_load_dwordx2 s[6:7], s[0:1], {KA_OUT}
    v_lshrrev_b32 v2, 6, v0
    v_and_b32 v1, 63, v0
    v_lshlrev_b32 v3, 4, v1
    v_readfirstlane_b32 s20, v2
    v_lshlrev_b32 v4, 3, v1
    s_lshl_b32 s21, s2, 1
    s_add_u32 s21, s21, s20
    s_mul_i32 s22, s21, 4608
    s_and_b32 s23, s21, 7
    s_lshr_b32 s24, s21, 3
    s_and_b32 s25, s24, 3
    s_lshr_b32 s26, s24, 2
    s_and_b32 s27, s23, 3
    s_lshr_b32 s28, s23, 2
    s_lshl_b32 s26, s26, 2
    s_add_u32 s26, s26, s27
    s_lshl_b32 s28, s28, 10
    s_add_u32 s26, s26, s28
    s_mul_i32 s26, s26, 1152
    s_mul_i32 s29, s25, 288
    s_add_u32 s26, s26, s29
    s_and_b32 s25, s25, 1
    s_lshl_b32 s30, s25, 5
    s_add_u32 s30, s30, s26
    s_xor_b32 s25, s25, 1
    s_lshl_b32 s31, s25, 8
    s_add_u32 s31, s31, s26
    v_and_b32 v5, 15, v1
    v_mul_u32_u24 v5, {64*1152}, v5
    v_lshrrev_b32 v6, 4, v1
    v_lshl_add_u32 v7, v6, 3, v5
    v_lshl_add_u32 v6, v6, 4, v5
    s_waitcnt lgkmcnt(0)''')
    a.srd(8,4,PART_SZ,PART_OFF); a.srd(12,4,H_SZ,H_OFF); a.srd(16,6,XSZ)
    for s in range(4):
        a(f's_add_u32 s32, s22, {s*64*8*4608}\ns_add_u32 s33, s32, 4096')
        for p in range(4): a(f'buffer_load_dwordx4 {vr(16+20*s+4*p)}, v3, s[8:11], s32 offen offset:{p*1024}')
        a(f'buffer_load_dwordx2 {vr(32+20*s,2)}, v4, s[8:11], s33 offen')
    for p in range(4): a(f'buffer_load_dwordx4 {vr(96+4*p)}, v6, s[12:15], s30 offen offset:{p*64}')
    a(f'buffer_load_dwordx2 v[112:113], v7, s[12:15], s31 offen')
    a('s_mov_b32 s34, 0xffff0000\ns_waitcnt vmcnt(0)')
    for r in range(18):
        a(f'v_lshlrev_b32 v8, 16, v{16+r}\nv_and_b32 v9, s34, v{16+r}')
        for s in range(1,5):
            a(f'v_lshlrev_b32 v10, 16, v{16+20*s+r}\nv_and_b32 v11, s34, v{16+20*s+r}\nv_add_f32 v8, v8, v10\nv_add_f32 v9, v9, v11')
        a(f'v_cvt_pk_bf16_f32 v{16+r}, v8, v9')
    for p in range(4): a(f'buffer_store_dwordx4 {vr(16+4*p)}, v6, s[16:19], s30 offen offset:{p*64}')
    a(f'buffer_store_dwordx2 v[32:33], v7, s[16:19], s31 offen')
    if STAMPS: a.stamp_end(kidx,tmp=40)
    a(f'Lend_{name}:\ns_endpgm')
    a.end(name,(256,1,1),128,0,120)
    return 256

if __name__=='__main__':
    a=Asm(); ns=[]
    ns.append(k_prep(a,0)); ns.append(k_gemm1(a,1)); ns.append(k_gemm2(a,2)); ns.append(k_reduce(a,3))
    open(sys.argv[1],'w').write(a.text())
    print(','.join(map(str,ns)))
```

```python
import sys, os
sys.path.insert(0, os.path.dirname(os.path.abspath(__file__)))
from asmlib import *

STAMPS = os.environ.get('STAMPS','0')=='1'
TRACE = os.environ.get('TRACE','0')=='1'
X = set(os.environ.get('X','').split(','))
W1F_OFF=0x0000000; W1F_SZ=288*36864
W2F_OFF=0x0C00000; W2F_SZ=16*18*18432
RAB_OFF=0x1200000; RAB_SZ=64*32*1152
HNF_OFF=0x1600000; HNF_SZ=128*18432
H_OFF  =0x1A00000; H_SZ=2048*1152
GF_OFF =0x2000000; GF_SZ=128*144*1024
PART_OFF=0x4000000; PART_SZ=4*64*8*4608
XSZ=2048*1152
KA_X=0; KA_CS=8; KA_SS=16; KA_CD=24; KA_SD=32; KA_WG=48; KA_WU=56; KA_WD=64; KA_OUT=72; KA_DBG=80; KA_WS=88
NUNITS=3888
MM='v_mfma_f32_16x16x32_bf16'

def vr(b,n=4): return f'v[{b}:{b+n-1}]'
def sr(b,n=4): return f's[{b}:{b+n-1}]'

def prep_body(a, U, done, limit=NUNITS):
    Lw2=a.label('Lw2')
    a(f'''s_load_dwordx4 s[24:27], s[0:1], {KA_WG}
    s_load_dwordx2 s[28:29], s[0:1], {KA_WD}
    s_load_dwordx2 s[30:31], s[0:1], {KA_WS}
    v_lshrrev_b32 v2, 3, v1
    v_and_b32 v3, 7, v1
    v_lshlrev_b32 v4, 4, v1
    v_lshrrev_b32 v5, 1, v2
    v_and_b32 v5, 1, v5
    v_lshlrev_b32 v5, 2, v5
    v_xor_b32 v5, v5, v3
    v_lshlrev_b32 v5, 4, v5
    v_lshrrev_b32 v7, 4, v1
    v_and_b32 v10, 15, v1
    v_lshrrev_b32 v11, 2, v10
    v_lshl_add_u32 v11, v7, 3, v11
    v_lshlrev_b32 v11, 7, v11
    v_add_u32 v11, s21, v11
    v_and_b32 v8, 1, v7
    v_bfe_u32 v12, v10, 3, 1
    v_lshl_or_b32 v8, v12, 1, v8
    v_lshlrev_b32 v8, 5, v8
    v_and_b32 v9, 3, v10
    s_waitcnt lgkmcnt(0)
    s_cmp_ge_u32 s22, {limit}
    s_cbranch_scc1 {done}
    s_cmp_ge_u32 s22, 2592
    s_cbranch_scc1 {Lw2}''')
    a(f'''v_mul_u32_u24 v6, 9216, v2
    v_add_u32 v5, v5, v6
    v_xor_b32 v6, 32, v5
    s_mul_i32 s44, s22, 3641
    s_lshr_b32 s44, s44, 16
    s_mul_i32 s45, s44, 18
    s_sub_u32 s45, s22, s45
    s_and_b32 s47, s44, 1
    s_lshr_b32 s44, s44, 1
    s_cmp_eq_u32 s47, 0
    s_cselect_b32 s32, s24, s26
    s_cselect_b32 s33, s25, s27
    s_mov_b32 s34, {576*9216}
    s_mov_b32 s35, 0x20000''')
    a.srd(40,30,W1F_SZ,W1F_OFF)
    a(f'''s_mul_i32 s46, s45, {32*9216}
    s_lshl_b32 s49, s44, 7
    s_add_u32 s46, s46, s49
    s_mov_b32 s48, s21''')
    for u in range(U):
        for p in range(4):
            a(f'''s_mov_b32 m0, s48
            s_add_u32 s49, s46, {(u*32+p*8)*9216}
            s_add_u32 s48, s48, 1024
            buffer_load_dwordx4 v{5+(p&1)}, s[32:35], s49 offen lds''')
    a(f'''v_lshl_or_b32 v12, v9, 3, v8
    v_add_u32 v12, v12, v11
    v_xor_b32 v13, 32, v12
    v_xor_b32 v14, 64, v12
    v_xor_b32 v15, 96, v12
    s_mul_i32 s50, s44, {4*36864}
    s_mul_i32 s47, s47, 3072
    s_add_u32 s50, s50, s47''')
    for u in range(U):
        a(f'''s_add_u32 s46, s45, {u}
        s_mul_i32 s49, s46, 43
        s_lshr_b32 s49, s49, 7
        s_mul_i32 s49, s49, 3
        s_add_u32 s46, s46, s49
        s_lshl_b32 s46, s46, 10
        s_add_u32 s46, s46, s50''')
        a(f's_waitcnt vmcnt({4*(U-1)})')
        for cc in range(4):
            d=16+(u*4+cc)*4
            a(f'ds_read_b64_tr_b16 v[{d}:{d+1}], v{12+cc} offset:{u*4096}')
            a(f'ds_read_b64_tr_b16 v[{d+2}:{d+3}], v{12+cc} offset:{u*4096+512}')
        for cc in range(4):
            d=16+(u*4+cc)*4
            a(f's_add_u32 s51, s46, {cc*36864}')
            a(f's_waitcnt lgkmcnt({6-2*cc})')
            a(f'buffer_store_dwordx4 {vr(d)}, v4, s[40:43], s51 offen')
    a(f's_branch {done}')
    a(f'{Lw2}:')
    a(f'''v_mul_u32_u24 v6, 1152, v2
    v_add_u32 v5, v5, v6
    v_xor_b32 v6, 32, v5''')
    a.srd(32,28,4608*1152); a.srd(40,30,W2F_SZ,W2F_OFF)
    a(f's_sub_u32 s22, s22, 2592\ns_mov_b32 s48, s21')
    for u in range(U):
        ks=52+2*u; L=53+2*u
        a(f'''s_add_u32 s44, s22, {u}
        s_mul_i32 s{ks}, s44, 7282
        s_lshr_b32 s{ks}, s{ks}, 16
        s_mul_i32 s45, s{ks}, 9
        s_sub_u32 s{L}, s44, s45
        s_mul_i32 s46, s{ks}, {32*1152}
        s_lshl_b32 s47, s{L}, 7
        s_add_u32 s46, s46, s47''')
        for p in range(4):
            a(f'''s_mov_b32 m0, s48
            s_add_u32 s49, s46, {p*8*1152}
            s_add_u32 s48, s48, 1024
            buffer_load_dwordx4 v{5+(p&1)}, s[32:35], s49 offen lds''')
    for u in range(U):
        ks=52+2*u; L=53+2*u
        a(f'''s_mul_i32 s44, s{ks}, 1821
        s_lshr_b32 s44, s44, 16
        s_mul_i32 s45, s44, 36
        s_sub_u32 s45, s{ks}, s45
        s_mul_i32 s50, s44, {4*18*18432}
        s_cmp_ge_u32 s45, 18
        s_cselect_b32 s46, 18, 0
        s_cselect_b32 s47, 9216, 0
        s_sub_u32 s45, s45, s46
        s_mul_i32 s45, s45, 18432
        s_add_u32 s50, s50, s45
        s_add_u32 s50, s50, s47''')
        a(f's_waitcnt vmcnt({4*(U-1)})')
        for b in range(4):
            d=16+(u*4+b)*4
            sing=2 if b<2 else 6
            a(f'''s_cmp_eq_u32 s{L}, {sing}
            s_cselect_b32 s44, 8, 16
            s_cselect_b32 s45, {32*(b&1)}, {8*(b&1)}
            s_add_u32 s45, s45, {64*(b>>1)}
            v_mov_b32 v13, s45
            v_mad_u32_u24 v13, v9, s44, v13
            v_xor_b32 v13, v13, v8
            v_add_u32 v13, v13, v11
            ds_read_b64_tr_b16 v[{d}:{d+1}], v13 offset:{u*4096}
            ds_read_b64_tr_b16 v[{d+2}:{d+3}], v13 offset:{u*4096+512}''')
        for b in range(4):
            d=16+(u*4+b)*4
            a(f'''s_lshl_b32 s44, s{L}, 2
            s_add_u32 s44, s44, {b}
            s_mul_i32 s45, s44, 57
            s_lshr_b32 s45, s45, 9
            s_mul_i32 s46, s45, 9
            s_sub_u32 s46, s44, s46
            s_and_b32 s47, s45, 1
            s_sub_u32 s46, s46, s47
            s_cmp_lt_i32 s46, 0
            s_cselect_b32 s46, 8, s46
            s_mul_i32 s45, s45, {18*18432}
            s_lshl_b32 s46, s46, 10
            s_add_u32 s51, s50, s45
            s_add_u32 s51, s51, s46
            s_waitcnt lgkmcnt({6-2*b})
            buffer_store_dwordx4 {vr(d)}, v4, s[40:43], s51 offen''')
    a(f's_branch {done}')

def red_q(a, v, t):
    a(f'''v_mov_b32 v{t}, v{v}
    s_nop 1
    v_permlane32_swap_b32 v{t}, v{v}
    s_nop 0
    v_add_f32 v{v}, v{v}, v{t}
    v_mov_b32 v{t}, v{v}
    s_nop 1
    v_permlane16_swap_b32 v{t}, v{v}
    s_nop 0
    v_add_f32 v{v}, v{v}, v{t}''')

def ln_scale(a, sm, sq, t):
    a(f'''v_mul_f32 v{sm}, 0x3ae38e39, v{sm}
    v_mul_f32 v{sq}, 0x3ae38e39, v{sq}
    v_fma_f32 v{sq}, -v{sm}, v{sm}, v{sq}
    v_max_f32 v{sq}, 0, v{sq}
    v_cvt_pk_bf16_f32 v{sq}, v{sq}, v{sq}
    v_lshlrev_b32 v{sq}, 16, v{sq}
    v_add_f32 v{sq}, 0x3727c5ac, v{sq}
    v_cvt_pk_bf16_f32 v{sq}, v{sq}, v{sq}
    v_lshlrev_b32 v{sq}, 16, v{sq}
    v_sqrt_f32 v{sq}, v{sq}
    s_nop 0
    v_cvt_pk_bf16_f32 v{sq}, v{sq}, v{sq}
    v_lshlrev_b32 v{sq}, 16, v{sq}
    v_rcp_f32 v{sq}, v{sq}
    s_nop 0''')

def k_fnet1(a, kidx, u0, u1):
    name='fnet1_kernel'; NW=6; U=3; NF=192
    NP=(u1-u0+NW*U-1)//(NW*U); NWG=NF+NP
    BB=16; RB=88; AR=120; ACC=144; ST=73728
    a.begin(name)
    a(f's_cmp_ge_u32 s2, {NWG}\ns_cbranch_scc1 Lend_{name}')
    if STAMPS: a.stamp_start()
    a(f'''v_lshrrev_b32 v2, 6, v0
    v_and_b32 v1, 63, v0
    s_nop 0
    v_readfirstlane_b32 s23, v2
    s_cmp_lt_u32 s2, {NF}
    s_cbranch_scc1 Lf_{name}
    s_sub_u32 s20, s2, {NF}
    s_mul_i32 s20, s20, {NW}
    s_add_u32 s20, s20, s23
    s_mul_i32 s22, s20, {U}
    s_add_u32 s22, s22, {u0}
    s_mul_i32 s21, s23, {U*4096}''')
    prep_body(a,U,f'Ldone_{name}',u1)
    a(f'Lf_{name}:')
    a(f'''s_load_dwordx4 s[4:7], s[0:1], {KA_X}
    s_load_dwordx4 s[8:11], s[0:1], {KA_SS}
    s_load_dwordx2 s[12:13], s[0:1], {KA_SD}
    s_load_dwordx2 s[14:15], s[0:1], {KA_WS}
    s_and_b32 s24, s2, 31
    s_lshr_b32 s25, s2, 5
    s_mul_i32 s26, s25, 6
    s_add_u32 s26, s26, s23
    v_and_b32 v2, 15, v1
    v_lshrrev_b32 v3, 4, v1
    v_lshrrev_b32 v4, 3, v1
    v_and_b32 v5, 7, v1
    v_xor_b32 v5, v5, v3
    v_lshlrev_b32 v5, 4, v5
    v_mul_u32_u24 v4, {32*1152}, v4
    v_add_u32 v4, v4, v5
    v_xor_b32 v5, 64, v4
    s_and_b32 s27, s23, 1
    s_lshr_b32 s28, s23, 1
    s_mul_i32 s29, s27, {36*1024}
    s_mul_i32 s30, s28, {3*1024}
    s_add_u32 s29, s29, s30
    s_mul_i32 s30, s27, {4*8*32*1152}
    s_mul_i32 s31, s28, 384
    s_add_u32 s30, s30, s31
    s_mul_i32 s31, s24, 1152
    s_add_u32 s30, s30, s31
    s_waitcnt lgkmcnt(0)''')
    a.srd(16,4,XSZ)
    for drg in range(4):
        for dcg in range(3):
            a(f'''s_add_u32 m0, s29, {(drg*9+dcg)*1024}
            s_add_u32 s32, s30, {drg*8*32*1152+dcg*128}
            buffer_load_dwordx4 v{4+(drg&1)}, s[16:19], s32 offen lds''')
    a(f'''s_cmp_lt_u32 s26, 18
    s_cselect_b32 s34, s10, s12
    s_cselect_b32 s35, s11, s13
    s_cselect_b32 s33, 0, 18
    s_sub_u32 s33, s26, s33
    s_mul_i32 s33, s33, {16*1152}
    s_add_u32 s34, s34, s33
    s_addc_u32 s35, s35, 0
    s_add_u32 s36, s10, {288*1152}
    s_addc_u32 s37, s11, 0
    s_cmp_eq_u32 s26, 18
    s_cselect_b32 s36, s36, s34
    s_cselect_b32 s37, s37, s35
    v_mov_b32 v6, s34
    v_mov_b32 v7, s35
    v_mov_b32 v8, s36
    v_mov_b32 v9, s37
    v_cmp_eq_u32 vcc, 0, v2
    v_mul_u32_u24 v10, 1152, v2
    v_lshl_add_u32 v10, v3, 4, v10
    v_cndmask_b32 v6, v6, v8, vcc
    v_cndmask_b32 v7, v7, v9, vcc
    v_add_co_u32 v6, vcc, v6, v10
    s_nop 1
    v_addc_co_u32 v7, vcc, 0, v7, vcc''')
    for ks in range(18):
        a(f'global_load_dwordx4 {vr(BB+4*ks)}, v[6:7], off offset:{64*ks}')
    a(f'''v_lshlrev_b32 v10, 17, v2
    v_lshl_add_u32 v10, v3, 3, v10''')
    for Tr in range(4):
        if Tr<2:
            a(f'v_add_u32 v11, {Tr*16*32*4096}, v10\nv_mov_b32 v8, s6\nv_mov_b32 v9, s7')
        elif Tr==3:
            a(f'v_add_u32 v11, {16*32*4096}, v10\nv_mov_b32 v8, s8\nv_mov_b32 v9, s9')
        else:
            a(f'''v_cmp_eq_u32 vcc, 0, v2
            v_add_u32 v12, {32*32*4096}, v10
            v_mov_b32 v8, s8
            v_mov_b32 v9, s9
            v_mov_b32 v13, s6
            v_mov_b32 v14, s7
            v_cndmask_b32 v11, v10, v12, vcc
            v_cndmask_b32 v8, v8, v13, vcc
            v_cndmask_b32 v9, v9, v14, vcc''')
        a('v_add_co_u32 v8, vcc, v8, v11\ns_nop 1\nv_addc_co_u32 v9, vcc, 0, v9, vcc')
        for j in range(2):
            for hh in range(2):
                d=RB+8*Tr+4*j+2*hh
                a(f'global_load_dwordx2 v[{d}:{d+1}], v[8:9], off offset:{64*j+32*hh}')
    a(f'''v_lshrrev_b32 v10, 1, v2
    v_xor_b32 v10, v10, v3
    v_lshlrev_b32 v10, 4, v10
    v_and_b32 v11, 7, v2
    v_lshl_add_u32 v10, v11, 7, v10
    v_lshrrev_b32 v11, 3, v2
    v_mul_u32_u24 v11, 9216, v11
    v_add_u32 v10, v10, v11
    v_xor_b32 v11, 64, v10
    s_waitcnt vmcnt(34)
    s_barrier''')
    Ls=a.label('Lnostat')
    a(f'''s_cmp_ge_u32 s23, 4
    s_cbranch_scc1 {Ls}
    s_mul_i32 s33, s23, 18432
    v_add_u32 v12, s33, v10
    v_add_u32 v13, s33, v11
    v_mov_b32 v{ACC}, 0
    v_mov_b32 v{ACC+1}, 0
    v_mov_b32 v{ACC+2}, 0
    v_mov_b32 v{ACC+3}, 0
    v_mov_b32 v15, 0x3f803f80''')
    for ks in range(6): a(f'ds_read_b128 {vr(AR+4*ks)}, v{12+(ks&1)} offset:{(ks>>1)*1024}')
    for ks in range(18):
        a(f's_waitcnt lgkmcnt({min(5,17-ks)})')
        b=AR+4*(ks%6)
        for r in range(4):
            a(f'v_dot2c_f32_bf16 v{ACC+(r&1)}, v{b+r}, v15\nv_dot2c_f32_bf16 v{ACC+2+(r&1)}, v{b+r}, v{b+r}')
        if ks+6<18: a(f'ds_read_b128 {vr(b)}, v{12+(ks&1)} offset:{((ks+6)>>1)*1024}')
    a(f's_nop 2\nv_add_f32 v{ACC}, v{ACC}, v{ACC+1}\nv_add_f32 v{ACC+2}, v{ACC+2}, v{ACC+3}')
    red_q(a,ACC,14); red_q(a,ACC+2,14)
    ln_scale(a,ACC,ACC+2,14)
    a(f'''s_lshl_b32 s33, s23, 6
    v_lshl_add_u32 v12, v2, 2, s33
    v_add_u32 v12, {ST}, v12
    ds_write_b32 v12, v{ACC+2}
    ds_write_b32 v12, v{ACC} offset:256
    {Ls}:''')
    for r in range(4): a(f'v_mov_b32 v{ACC+20+r}, 0x3f803f80')
    def ard(n):
        ks=n//4; T=n%4
        return f'ds_read_b128 {vr(AR+4*(n%6))}, v{10+(ks&1)} offset:{T*18432+(ks>>1)*1024}'
    a('s_waitcnt lgkmcnt(0)')
    for n in range(6): a(ard(n))
    for n in range(72):
        ks=n//4; T=n%4
        w=f'lgkmcnt({min(5,71-n)})'
        if T==0: w=f'vmcnt({16+17-ks}) '+w
        a('s_waitcnt '+w)
        c='0' if ks==0 else vr(ACC+4*T)
        a(f'{MM} {vr(ACC+4*T)}, {vr(AR+4*(n%6))}, {vr(BB+4*ks)}, {c}')
        if n+6<72: a(ard(n+6))
        if T==3:
            c='0' if ks==0 else vr(ACC+16)
            a(f'{MM} {vr(ACC+16)}, {vr(ACC+20)}, {vr(BB+4*ks)}, {c}')
    a(f'''s_barrier
    v_lshlrev_b32 v12, 4, v3
    v_add_u32 v12, {ST}, v12''')
    for T in range(4):
        a(f'ds_read_b128 {vr(BB+8*T)}, v12 offset:{64*T}\nds_read_b128 {vr(BB+8*T+4)}, v12 offset:{256+64*T}')
    a.srd(20,14,RAB_SZ,RAB_OFF)
    a(f'''s_lshr_b32 s33, s24, 1
    s_and_b32 s33, s33, 3
    s_xor_b32 s33, s33, s26
    s_lshl_b32 s33, s33, 5
    s_mul_i32 s36, s24, 1152
    s_add_u32 s33, s33, s36
    v_mul_u32_u24 v13, 36864, v2
    v_lshl_add_u32 v13, v3, 3, v13''')
    for T in range(4):
        a(f's_waitcnt lgkmcnt({6-2*T})')
        for i in range(4):
            a(f'v_fma_f32 v{ACC+4*T+i}, -v{BB+8*T+4+i}, v{ACC+16}, v{ACC+4*T+i}')
        for i in range(4):
            a(f'v_mul_f32 v{ACC+4*T+i}, v{ACC+4*T+i}, v{BB+8*T+i}')
        a(f'v_cvt_pk_bf16_f32 v{AR+2*T}, v{ACC+4*T}, v{ACC+4*T+1}\nv_cvt_pk_bf16_f32 v{AR+2*T+1}, v{ACC+4*T+2}, v{ACC+4*T+3}')
    a('s_waitcnt vmcnt(0)\ns_nop 0')
    for Tr in range(4):
        a(f'{MM} {vr(ACC+4*Tr)}, {vr(AR)}, {vr(RB+8*Tr)}, 0')
        a(f'{MM} {vr(ACC+4*Tr)}, {vr(AR+4)}, {vr(RB+8*Tr+4)}, {vr(ACC+4*Tr)}')
    a('s_nop 1')
    for Tr in range(4):
        if Tr==3: a('s_nop 0')
        a(f'''v_cvt_pk_bf16_f32 v{BB+2*Tr}, v{ACC+4*Tr}, v{ACC+4*Tr+1}
        v_cvt_pk_bf16_f32 v{BB+2*Tr+1}, v{ACC+4*Tr+2}, v{ACC+4*Tr+3}
        s_add_u32 s36, s33, {Tr*16*36864}
        buffer_store_dwordx2 v[{BB+2*Tr}:{BB+2*Tr+1}], v13, s[20:23], s36 offen''')
    a(f'Ldone_{name}:')
    if STAMPS: a.stamp_end(kidx,tmp=16)
    a(f'Lend_{name}:\ns_endpgm')
    a.end(name,(NWG,1,1),NW*64,ST+512,168)
    return NWG

def k_fnet2(a, kidx, u0, u1):
    name='fnet2_kernel'; NW=9; U=3; NF=128
    NP=(u1-u0+NW*U-1)//(NW*U); NWG=NF+NP
    YS=73728; YR=2320; PS=YS+16*YR
    a.begin(name)
    a(f's_cmp_ge_u32 s2, {NWG}\ns_cbranch_scc1 Lend_{name}')
    if STAMPS: a.stamp_start()
    a(f'''v_lshrrev_b32 v2, 6, v0
    v_and_b32 v1, 63, v0
    s_nop 0
    v_readfirstlane_b32 s23, v2
    s_cmp_lt_u32 s2, {NF}
    s_cbranch_scc1 Lf_{name}
    s_sub_u32 s20, s2, {NF}
    s_mul_i32 s20, s20, {NW}
    s_add_u32 s20, s20, s23
    s_mul_i32 s22, s20, {U}
    s_add_u32 s22, s22, {u0}
    s_mul_i32 s21, s23, {U*4096}''')
    prep_body(a,U,f'Ldone_{name}',u1)
    a(f'Lf_{name}:')
    a(f'''s_load_dwordx4 s[4:7], s[0:1], {KA_X}
    s_load_dwordx2 s[8:9], s[0:1], {KA_SS}
    s_load_dwordx2 s[14:15], s[0:1], {KA_WS}
    s_and_b32 s24, s2, 1
    s_lshl_b32 s24, s24, 5
    s_lshr_b32 s25, s2, 2
    s_add_u32 s24, s24, s25
    s_lshr_b32 s25, s2, 1
    s_and_b32 s25, s25, 1
    s_sub_u32 s26, 64, s24
    s_min_u32 s26, s26, s24
    s_and_b32 s27, s26, 31
    s_cmp_eq_u32 s27, 0
    s_cselect_b32 s27, 0, 32
    s_cselect_b32 s28, 0, -1
    s_add_u32 s27, s27, s26
    s_cmp_gt_u32 s24, 32
    s_cselect_b32 s29, 0x80008000, 0
    s_xor_b32 s30, s29, 0x80008000
    v_and_b32 v2, 15, v1
    v_lshrrev_b32 v3, 4, v1
    v_lshlrev_b32 v4, 4, v1
    s_mul_i32 s31, s26, 36864
    s_mul_i32 s32, s27, 36864
    s_lshl_b32 s33, s23, 12
    s_add_u32 s31, s31, s33
    s_add_u32 s32, s32, s33
    s_lshl_b32 s34, s25, 10
    s_add_u32 s34, s34, s24
    s_waitcnt lgkmcnt(0)''')
    a.srd(16,14,RAB_SZ,RAB_OFF)
    a('s_mov_b32 m0, s33\ns_nop 0')
    for p in range(4): a(f'buffer_load_dwordx4 v4, s[16:19], s31 offen offset:{p*1024} lds')
    a('s_add_u32 m0, s33, 36864\ns_nop 0')
    for p in range(4): a(f'buffer_load_dwordx4 v4, s[16:19], s32 offen offset:{p*1024} lds')
    a.srd(36,6,2048*4096); a.srd(40,8,2048*4096); a.srd(44,4,XSZ)
    a(f'''v_lshlrev_b32 v5, 18, v2
    v_lshl_add_u32 v5, v3, 3, v5
    s_lshl_b32 s35, s34, 12
    buffer_load_dwordx2 v[16:17], v5, s[36:39], s35 offen
    buffer_load_dwordx2 v[18:19], v5, s[36:39], s35 offen offset:32
    buffer_load_dwordx2 v[20:21], v5, s[40:43], s35 offen
    buffer_load_dwordx2 v[22:23], v5, s[40:43], s35 offen offset:32
    v_mul_u32_u24 v6, {64*1152}, v2
    v_lshl_add_u32 v6, v3, 4, v6
    s_mul_i32 s48, s34, 1152
    s_lshl_b32 s49, s23, 7
    s_add_u32 s48, s48, s49
    buffer_load_dwordx4 v[32:35], v6, s[44:47], s48 offen
    buffer_load_dwordx4 v[36:39], v6, s[44:47], s48 offen offset:64''')
    a(f'''v_lshrrev_b32 v7, 2, v2
    v_lshl_add_u32 v7, v3, 2, v7
    v_mul_u32_u24 v8, 1152, v7
    v_and_b32 v9, 3, v2
    v_lshl_add_u32 v8, v9, 3, v8
    v_bfe_u32 v7, v7, 1, 2
    v_lshlrev_b32 v7, 5, v7
    s_lshl_b32 s50, s23, 6''')
    for z,(off) in enumerate([0,32,18*32,19*32]):
        a(f's_add_u32 s51, s50, {off}\nv_xor_b32 v{10+z}, s51, v7\nv_add_u32 v{10+z}, v{10+z}, v8')
    a('s_waitcnt vmcnt(2)')
    for r in range(4):
        a(f'v_xor_b32 v{24+r}, s30, v{20+r}\nv_and_b32 v{24+r}, s28, v{24+r}\nv_xor_b32 v{28+r}, s29, v{16+r}\nv_and_b32 v{28+r}, s28, v{28+r}')
    a('s_barrier')
    for z in [0,2,1,3]:
        for blk in range(2):
            d=40+(z*2+blk)*4
            a(f'ds_read_b64_tr_b16 v[{d}:{d+1}], v{10+z} offset:{blk*36864}\nds_read_b64_tr_b16 v[{d+2}:{d+3}], v{10+z} offset:{blk*36864+18432}')
    a(f'''v_mul_u32_u24 v14, {YR}, v2
    v_add_u32 v14, {YS}, v14
    s_lshl_b32 s51, s23, 7
    v_lshl_add_u32 v7, v3, 4, s51
    v_add_u32 v8, v14, v7
    v_sub_u32 v9, v14, v7
    v_add_u32 v9, {(576-19)*4}, v9''')
    P=72; Q=80; PN=88
    for dc in range(2):
        a(f's_waitcnt lgkmcnt({12-8*dc})')
        a(f'{MM} {vr(P+4*dc)}, {vr(40+dc*8)}, v[16:19], 0')
        a(f'{MM} {vr(P+4*dc)}, {vr(44+dc*8)}, v[24:27], {vr(P+4*dc)}')
        a(f's_waitcnt lgkmcnt({8-8*dc})')
        a(f'{MM} {vr(Q+4*dc)}, {vr(56+dc*8)}, v[20:23], 0')
        a(f'{MM} {vr(Q+4*dc)}, {vr(60+dc*8)}, v[28:31], {vr(Q+4*dc)}')
    Ln=a.label('Lnyq')
    a(f'''s_cmp_lg_u32 s23, 0
    s_cbranch_scc1 {Ln}
    {MM} {vr(PN)}, v[56:59], v[16:19], 0
    {MM} {vr(PN)}, v[60:63], v[24:27], {vr(PN)}
    s_nop 7
    s_mov_b64 exec, 0xffff
    v_mov_b32 v{Q}, 0
    ds_write_b32 v14, v{PN} offset:{288*4}
    s_mov_b64 exec, -1
    {Ln}:
    s_nop 7''')
    for dc in range(2):
        for i in range(4): a(f'v_sub_f32 v{40+4*dc+i}, v{P+4*dc+i}, v{Q+4*dc+i}')
        a(f'ds_write_b128 v8, {vr(40+4*dc)} offset:{64*dc}')
        for i in range(4):
            a(f'v_add_f32 v{48+4*dc+i}, v{P+4*dc+i}, v{Q+4*dc+i}\nds_write_b32 v9, v{48+4*dc+i} offset:{(19-16*dc-i)*4}')
    a(f'''s_lshl_b32 s51, s23, 8
    v_lshl_add_u32 v7, v3, 5, s51
    v_add_u32 v8, v14, v7
    s_waitcnt lgkmcnt(0)
    s_barrier''')
    for ii in range(2):
        a(f'ds_read_b128 {vr(40+8*ii)}, v8 offset:{128*ii}\nds_read_b128 {vr(44+8*ii)}, v8 offset:{128*ii+16}')
    a.srd(16,14,H_SZ,H_OFF); a.srd(36,14,HNF_SZ,HNF_OFF)
    a('s_mov_b32 s52, 0xffff0000\nv_mov_b32 v10, 0\nv_mov_b32 v11, 0\ns_waitcnt vmcnt(0) lgkmcnt(0)')
    for r in range(8):
        a(f'''v_lshlrev_b32 v12, 16, v{32+r}
        v_and_b32 v13, s52, v{32+r}
        v_add_f32 v12, v12, v{40+2*r}
        v_add_f32 v13, v13, v{41+2*r}
        v_cvt_pk_bf16_f32 v{32+r}, v12, v13
        v_lshlrev_b32 v{40+2*r}, 16, v{32+r}
        v_and_b32 v{41+2*r}, s52, v{32+r}
        v_add_f32 v10, v10, v{40+2*r}
        v_fmac_f32 v11, v{40+2*r}, v{40+2*r}
        v_add_f32 v10, v10, v{41+2*r}
        v_fmac_f32 v11, v{41+2*r}, v{41+2*r}''')
    a(f'''buffer_store_dwordx4 v[32:35], v6, s[16:19], s48 offen
    buffer_store_dwordx4 v[36:39], v6, s[16:19], s48 offen offset:64''')
    red_q(a,10,12); red_q(a,11,12)
    a(f'''v_lshlrev_b32 v12, 3, v2
    v_add_u32 v12, {PS}, v12
    s_lshl_b32 s51, s23, 7
    v_add_u32 v13, s51, v12
    ds_write_b64 v13, v[10:11]
    s_waitcnt lgkmcnt(0)
    s_barrier''')
    for w in range(9): a(f'ds_read_b64 v[{56+2*w}:{57+2*w}], v12 offset:{128*w}')
    a(f'''s_lshl_b32 s51, s24, 1
    s_add_u32 s51, s51, s25
    s_mul_i32 s51, s51, 18432
    s_lshl_b32 s53, s23, 11
    s_add_u32 s51, s51, s53
    s_waitcnt lgkmcnt(0)''')
    for w in range(1,9): a(f'v_add_f32 v56, v56, v{56+2*w}\nv_add_f32 v57, v57, v{57+2*w}')
    ln_scale(a,56,57,12)
    a('v_cvt_pk_bf16_f32 v56, v56, v56\nv_lshlrev_b32 v56, 16, v56')
    for r in range(8):
        a(f'''v_sub_f32 v12, v{40+2*r}, v56
        v_sub_f32 v13, v{41+2*r}, v56
        v_cvt_pk_bf16_f32 v12, v12, v13
        v_and_b32 v13, s52, v12
        v_lshlrev_b32 v12, 16, v12
        v_mul_f32 v12, v12, v57
        v_mul_f32 v13, v13, v57
        v_cvt_pk_bf16_f32 v{60+r}, v12, v13''')
    a(f'''buffer_store_dwordx4 v[60:63], v4, s[36:39], s51 offen
    buffer_store_dwordx4 v[64:67], v4, s[36:39], s51 offen offset:1024''')
    a(f'Ldone_{name}:')
    if STAMPS: a.stamp_end(kidx,tmp=16)
    a(f'Lend_{name}:\ns_endpgm')
    a.end(name,(NWG,1,1),NW*64,PS+9*128,96)
    return NWG

def k_gemm1(a, kidx):
    name='gemm1_kernel'
    HB=16; ACC=[160,176]; AR=192; T=216
    a.begin(name)
    a(f's_cmp_ge_u32 s2, 256\ns_cbranch_scc1 Lend_{name}')
    if STAMPS: a.stamp_start()
    a(f'''s_load_dwordx2 s[4:5], s[0:1], {KA_WS}
    v_lshrrev_b32 v2, 6, v0
    v_and_b32 v1, 63, v0
    v_lshlrev_b32 v3, 4, v1
    v_readfirstlane_b32 s6, v2
    s_and_b32 s7, s2, 7
    s_lshr_b32 s20, s2, 3
    s_and_b32 s21, s7, 1
    s_lshl_b32 s21, s21, 2
    s_and_b32 s22, s20, 3
    s_add_u32 s21, s21, s22
    s_lshr_b32 s22, s7, 1
    s_lshl_b32 s22, s22, 3
    s_lshr_b32 s23, s20, 2
    s_add_u32 s22, s22, s23
    s_lshl_b32 s21, s21, 3
    s_add_u32 s21, s21, s6
    s_mul_i32 s23, s22, {9*36864}
    s_mul_i32 s24, s21, 36864
    s_mul_i32 s25, s6, 4608
    s_waitcnt lgkmcnt(0)''')
    a(f'''s_add_u32 s8, s4, s23
    s_addc_u32 s9, s5, 0
    s_mov_b32 s10, {9*36864}
    s_mov_b32 s11, 0x20000''')
    a.srd(12,4,HNF_SZ,HNF_OFF); a.srd(16,4,GF_SZ,GF_OFF)
    a(f'''v_add_u32 v4, s25, v3
    v_add_u32 v10, 18432, v3
    s_mov_b32 s26, s25''')
    def dma():
        return ['s_mov_b32 m0, s26\ns_mov_b32 exec_hi, 0\nbuffer_load_dwordx4 v4, s[8:11], 0 offen lds\ns_mov_b32 exec_hi, -1']+\
               [f'buffer_load_dwordx4 v4, s[8:11], 0 offen offset:{512+1024*p} lds' for p in range(4)]+\
               [f'v_add_u32 v4, {36864}, v4\ns_add_u32 s26, s26, 36864\ns_cmp_ge_u32 s26, {4*36864}\ns_cselect_b32 s26, s25, s26']
    def HR(ks,m): return HB+8*ks+4*m
    def hload(ks,m):
        pre=f's_add_u32 s27, s24, {(ks>>2)*4096}\n' if m==0 else ''
        return pre+f'buffer_load_dwordx4 {vr(HR(ks,m))}, v{3 if m==0 else 10}, s[12:15], s27 offen offset:{(ks&3)*1024}'
    for x in dma(): a(x)
    for ks in range(9):
        for m in range(2): a(hload(ks,m))
    for x in dma(): a(x)
    for ks in range(9,18):
        for m in range(2): a(hload(ks,m))
    for x in dma(): a(x)
    for x in dma(): a(x)
    a(f'''v_bfe_u32 v5, v1, 4, 1
    v_mul_u32_u24 v5, {144*1024}, v5
    v_and_b32 v6, 15, v1
    v_lshrrev_b32 v7, 5, v1
    v_lshl_add_u32 v6, v7, 4, v6
    v_lshl_add_u32 v5, v6, 4, v5
    s_mul_i32 s28, s21, {2*144*1024}
    s_mul_i32 s29, s22, {9*512}
    s_add_u32 s28, s28, s29
    s_mov_b32 s30, 0xbfb8aa3b
    v_mov_b32 v8, v3
    v_add_u32 v9, 36864, v3
    s_mov_b32 s31, 36864''')
    def epilogue(acc):
        ops=[]
        for j in range(8): ops.append(f'v_mul_f32 v{T+j}, s30, v{acc+j}')
        for j in range(8): ops.append(f'v_exp_f32 v{T+j}, v{T+j}')
        for j in range(8): ops.append(f'v_mul_f32 v{T+8+j}, v{acc+j}, v{acc+8+j}')
        for j in range(8): ops.append(f'v_add_f32 v{T+j}, 1.0, v{T+j}')
        for j in range(8): ops.append(f'v_rcp_f32 v{T+j}, v{T+j}')
        for j in range(8): ops.append(f'v_mul_f32 v{T+8+j}, v{T+8+j}, v{T+j}')
        for j in range(4): ops.append(f'v_cvt_pk_bf16_f32 v{T+16+j}, v{T+8+2*j}, v{T+9+2*j}')
        ops.append('s_nop 1')
        ops.append(f'v_permlane16_swap_b32 v{T+16}, v{T+18}')
        ops.append(f'v_permlane16_swap_b32 v{T+17}, v{T+19}')
        ops.append(f'buffer_store_dwordx4 {vr(T+16)}, v5, s[16:19], s28 offen\ns_add_u32 s28, s28, 512')
        return ops
    def body(acc, prev, first=False):
        fill={k:[] for k in range(72)}
        if not first:
            fill[0].append('s_waitcnt vmcnt(5)\ns_barrier')
            d=dma() if 'nodma' not in X else []
            for i,x in enumerate(d): fill[2+2*i].append(x)
            ep=epilogue(prev) if 'noep' not in X else ['s_nop 0']
            n=len(ep); s0=8; ns=62
            for i,x in enumerate(ep): fill[s0+i*ns//n].append(x)
        else:
            fill[54].append('s_barrier')
        n=0
        for grp in range(12):
            kg=grp>>1; mat=grp&1
            for m in range(2):
                for i in range(3):
                    ks=3*kg+i; fr=3*grp+i; reg=AR+4*(fr%6)
                    w=[]
                    if first and mat==0:
                        after=(17-ks)*2+(1-m)+10+(5 if ks<9 else 0)
                        w.append(f'vmcnt({after})')
                    if m==0: w.append(f'lgkmcnt({5-i})')
                    if w: a('s_waitcnt '+' '.join(w))
                    d=acc+8*mat+4*m
                    c='0' if ks==0 else vr(d)
                    a(f'{MM} {vr(d)}, {vr(reg)}, {vr(HR(ks,m))}, {c}')
                    if m==1 and 'nolds' not in X:
                        fn=fr+6
                        if fn<36: a(f'ds_read_b128 {vr(reg)}, v8 offset:{fn*1024}')
                        else:     a(f'ds_read_b128 {vr(reg)}, v9 offset:{(fn-36)*1024}')
                    for x in fill[n]: a(x)
                    n+=1
        a(f'''v_mov_b32 v8, v9
        s_add_u32 s31, s31, 36864
        s_cmp_ge_u32 s31, {4*36864}
        s_cselect_b32 s31, 0, s31
        v_add_u32 v9, s31, v3''')
    if TRACE: a.tp(0)
    a('s_waitcnt vmcnt(51)\ns_barrier')
    if TRACE: a.tp(1)
    for k in range(6): a(f'ds_read_b128 {vr(AR+4*k)}, v8 offset:{k*1024}')
    body(ACC[0],None,first=True)
    if TRACE:
        for it in range(4):
            a.tp(2+2*it); body(ACC[1],ACC[0]); a.tp(3+2*it); body(ACC[0],ACC[1])
        a.tp(10)
    else:
        a('s_mov_b32 s32, 0')
        a(f'Lloop_{name}:')
        body(ACC[1],ACC[0]); body(ACC[0],ACC[1])
        a(f's_add_u32 s32, s32, 1\ns_cmp_lt_u32 s32, 4\ns_cbranch_scc1 Lloop_{name}')
    a('s_nop 7')
    for x in epilogue(ACC[0]): a(x)
    if TRACE:
        a.tp(11); a('s_waitcnt vmcnt(0)'); a.tp(12); a.trace_end(kidx,13,tmp=16)
    if STAMPS: a.stamp_end(kidx,tmp=16)
    a(f'Lend_{name}:\ns_endpgm')
    a.end(name,(256,1,1),512,4*36864,240)
    return 256

import gen as G1
G1.STAMPS=STAMPS
if __name__=='__main__':
    a=Asm(); ns=[]
    SPLIT=int(os.environ.get('SPLIT','1944'))
    ns.append(k_fnet1(a,0,0,SPLIT)); ns.append(k_fnet2(a,1,SPLIT,NUNITS)); ns.append(k_gemm1(a,2)); ns.append(G1.k_gemm2(a,3)); ns.append(G1.k_reduce(a,4))
    hdr=open(os.path.join(os.path.dirname(os.path.abspath(__file__)),'header.txt')).read()
    open(sys.argv[1],'w').write(a.text(hdr))
    print(','.join(map(str,ns)))
```

```python
import sys, os
sys.path.insert(0, os.path.dirname(os.path.abspath(__file__)))
from asmlib import *

STAMPS = os.environ.get('STAMPS','0')=='1'
TRACE = os.environ.get('TRACE','0')=='1'
X = set(os.environ.get('X','').split(','))
W1F_OFF=0x0000000; W1F_SZ=288*36864
W2F_OFF=0x0C00000; W2F_SZ=16*18*18432
RAB_OFF=0x1200000; RAB_SZ=64*32*1152
HNF_OFF=0x1600000; HNF_SZ=64*36864
H_OFF  =0x1A00000; H_SZ=2048*1152
GF_OFF =0x2000000; GF_SZ=128*144*1024
PART_OFF=0x4000000; PART_SZ=4*64*8*4608
XSZ=2048*1152
KA_X=0; KA_CS=8; KA_SS=16; KA_CD=24; KA_SD=32; KA_WG=48; KA_WU=56; KA_WD=64; KA_OUT=72; KA_DBG=80; KA_WS=88

def vr(b,n=4): return f'v[{b}:{b+n-1}]'
def sr(b,n=4): return f's[{b}:{b+n-1}]'

def prep_body(a, U, done):
    Lw2=a.label('Lw2')
    a(f'''s_load_dwordx4 s[24:27], s[0:1], {KA_WG}
    s_load_dwordx2 s[28:29], s[0:1], {KA_WD}
    s_load_dwordx2 s[30:31], s[0:1], {KA_WS}
    s_mul_i32 s22, s20, {U}
    v_lshrrev_b32 v2, 3, v1
    v_and_b32 v3, 7, v1
    v_lshlrev_b32 v4, 4, v1
    s_cmp_ge_u32 s22, 3888
    s_cbranch_scc1 {done}
    s_cmp_ge_u32 s22, 2592
    s_cbranch_scc1 {Lw2}''')
    a(f'''v_lshrrev_b32 v5, 1, v2
    v_and_b32 v5, 1, v5
    v_lshlrev_b32 v5, 1, v5
    v_xor_b32 v5, v5, v3
    v_lshlrev_b32 v5, 4, v5
    v_mul_u32_u24 v6, 9216, v2
    v_add_u32 v5, v5, v6
    v_xor_b32 v6, 64, v5
    s_waitcnt lgkmcnt(0)''')
    a.srd(32,24,576*9216); a.srd(36,26,576*9216); a.srd(40,30,W1F_SZ,W1F_OFF)
    a(f'''s_mul_i32 s44, s22, 1821
    s_lshr_b32 s44, s44, 16
    s_mul_i32 s45, s44, 36
    s_sub_u32 s45, s22, s45
    s_mul_i32 s46, s45, {16*9216}
    s_lshl_b32 s47, s44, 7
    s_add_u32 s46, s46, s47
    s_mov_b32 s48, s21''')
    for u in range(U):
        for m in range(2):
            for p in range(2):
                a(f'''s_mov_b32 m0, s48
                s_add_u32 s49, s46, {(u*16+p*8)*9216}
                s_add_u32 s48, s48, 1024
                buffer_load_dwordx4 v{5+m}, {sr(32+4*m)}, s49 offen lds''')
    a(f'''v_lshrrev_b32 v7, 4, v1
    v_and_b32 v8, 1, v7
    v_lshrrev_b32 v9, 1, v7
    v_and_b32 v10, 15, v1
    v_lshrrev_b32 v11, 2, v10
    v_lshl_add_u32 v11, v9, 3, v11
    v_lshlrev_b32 v11, 7, v11
    v_lshl_add_u32 v11, v8, 11, v11
    v_bfe_u32 v12, v10, 3, 1
    v_lshl_or_b32 v12, v8, 1, v12
    v_lshl_add_u32 v11, v12, 5, v11
    v_and_b32 v12, 1, v10
    v_lshlrev_b32 v12, 4, v12
    v_add_u32 v11, v11, v12
    v_bfe_u32 v12, v10, 1, 1
    v_lshl_add_u32 v11, v12, 3, v11
    v_add_u32 v11, s21, v11
    v_xor_b32 v12, 32, v11
    v_xor_b32 v13, 64, v11
    v_xor_b32 v14, 96, v11
    s_mul_i32 s50, s44, {4*36864}
    s_lshl_b32 s51, s45, 10
    s_add_u32 s50, s50, s51''')
    for u in range(U):
        a(f's_waitcnt vmcnt({4*(U-1-u)+4*u})')
        for cc in range(4):
            d=16+(u*4+cc)*4
            a(f'ds_read_b64_tr_b16 v[{d}:{d+1}], v{11+cc} offset:{u*4096}')
            a(f'ds_read_b64_tr_b16 v[{d+2}:{d+3}], v{11+cc} offset:{u*4096+512}')
        for cc in range(4):
            d=16+(u*4+cc)*4
            a(f's_add_u32 s51, s50, {cc*36864+u*1024}')
            a(f's_waitcnt lgkmcnt({6-2*cc})')
            a(f'buffer_store_dwordx4 {vr(d)}, v4, s[40:43], s51 offen')
    a(f's_branch {done}')
    a(f'{Lw2}:')
    a(f'''v_lshrrev_b32 v5, 1, v2
    v_and_b32 v5, 1, v5
    v_lshlrev_b32 v5, 2, v5
    v_xor_b32 v5, v5, v3
    v_lshlrev_b32 v5, 4, v5
    v_mul_u32_u24 v6, 1152, v2
    v_add_u32 v5, v5, v6
    v_xor_b32 v6, 32, v5
    s_waitcnt lgkmcnt(0)''')
    a.srd(32,28,4608*1152); a.srd(40,30,W2F_SZ,W2F_OFF)
    a(f's_sub_u32 s22, s22, 2592\ns_mov_b32 s48, s21')
    for u in range(U):
        ks=52+2*u; L=53+2*u
        a(f'''s_add_u32 s44, s22, {u}
        s_mul_i32 s{ks}, s44, 7282
        s_lshr_b32 s{ks}, s{ks}, 16
        s_mul_i32 s45, s{ks}, 9
        s_sub_u32 s{L}, s44, s45
        s_mul_i32 s46, s{ks}, {32*1152}
        s_lshl_b32 s47, s{L}, 7
        s_add_u32 s46, s46, s47''')
        for p in range(4):
            a(f'''s_mov_b32 m0, s48
            s_add_u32 s49, s46, {p*8*1152}
            s_add_u32 s48, s48, 1024
            buffer_load_dwordx4 v{5+(p&1)}, s[32:35], s49 offen lds''')
    a(f'''v_lshrrev_b32 v7, 4, v1
    v_and_b32 v10, 15, v1
    v_lshrrev_b32 v11, 2, v10
    v_lshl_add_u32 v11, v7, 3, v11
    v_lshlrev_b32 v11, 7, v11
    v_add_u32 v11, s21, v11
    v_and_b32 v8, 1, v7
    v_bfe_u32 v12, v10, 3, 1
    v_lshl_or_b32 v8, v12, 1, v8
    v_lshlrev_b32 v8, 5, v8
    v_and_b32 v9, 3, v10''')
    for u in range(U):
        ks=52+2*u; L=53+2*u
        a(f'''s_mul_i32 s44, s{ks}, 1821
        s_lshr_b32 s44, s44, 16
        s_mul_i32 s45, s44, 36
        s_sub_u32 s45, s{ks}, s45
        s_mul_i32 s50, s44, {4*18*18432}
        s_cmp_ge_u32 s45, 18
        s_cselect_b32 s46, 18, 0
        s_cselect_b32 s47, 9216, 0
        s_sub_u32 s45, s45, s46
        s_mul_i32 s45, s45, 18432
        s_add_u32 s50, s50, s45
        s_add_u32 s50, s50, s47''')
        a(f's_waitcnt vmcnt({4*(U-1-u)+4*u})')
        for b in range(4):
            d=16+(u*4+b)*4
            sing=2 if b<2 else 6
            a(f'''s_cmp_eq_u32 s{L}, {sing}
            s_cselect_b32 s44, 8, 16
            s_cselect_b32 s45, {32*b}, {64*(b>>1)+8*(b&1)}
            v_mov_b32 v13, s45
            v_mad_u32_u24 v13, v9, s44, v13
            v_xor_b32 v13, v13, v8
            v_add_u32 v13, v13, v11
            ds_read_b64_tr_b16 v[{d}:{d+1}], v13 offset:{u*4096}
            ds_read_b64_tr_b16 v[{d+2}:{d+3}], v13 offset:{u*4096+512}''')
        for b in range(4):
            d=16+(u*4+b)*4
            a(f'''s_lshl_b32 s44, s{L}, 2
            s_add_u32 s44, s44, {b}
            s_mul_i32 s45, s44, 57
            s_lshr_b32 s45, s45, 9
            s_mul_i32 s46, s45, 9
            s_sub_u32 s46, s44, s46
            s_and_b32 s47, s45, 1
            s_sub_u32 s46, s46, s47
            s_cmp_lt_i32 s46, 0
            s_cselect_b32 s46, 8, s46
            s_mul_i32 s45, s45, {18*18432}
            s_lshl_b32 s46, s46, 10
            s_add_u32 s51, s50, s45
            s_add_u32 s51, s51, s46
            s_waitcnt lgkmcnt({6-2*b})
            buffer_store_dwordx4 {vr(d)}, v4, s[40:43], s51 offen''')
    a(f's_branch {done}')

def k_prep(a, kidx):
    name='prep_kernel'; NW=6; U=3; NWG=3888//(NW*U)
    a.begin(name)
    a(f's_cmp_ge_u32 s2, {NWG}\ns_cbranch_scc1 Lend_{name}')
    if STAMPS: a.stamp_start()
    a(f'''v_lshrrev_b32 v2, 6, v0
    v_and_b32 v1, 63, v0
    s_nop 0
    v_readfirstlane_b32 s23, v2
    s_nop 3
    s_mul_i32 s20, s2, {NW}
    s_add_u32 s20, s20, s23
    s_mul_i32 s21, s23, {U*4096}''')
    prep_body(a,U,f'Ldone_{name}')
    a(f'Ldone_{name}:')
    if STAMPS: a.stamp_end(kidx,tmp=16)
    a(f'Lend_{name}:\ns_endpgm')
    a.end(name,(NWG,1,1),NW*64,NW*U*4096,64)
    return NWG

def k_gemm1(a, kidx):
    name='gemm1_kernel'
    HB=16; ACC=[160,176]; AR=192; R=6; T=216
    a.begin(name)
    a(f's_cmp_ge_u32 s2, 256\ns_cbranch_scc1 Lend_{name}')
    if STAMPS: a.stamp_start()
    a(f'''s_load_dwordx2 s[4:5], s[0:1], {KA_WS}
    v_lshrrev_b32 v2, 6, v0
    v_and_b32 v1, 63, v0
    v_lshlrev_b32 v3, 4, v1
    v_readfirstlane_b32 s6, v2
    s_and_b32 s7, s2, 7
    s_lshr_b32 s20, s2, 3
    s_and_b32 s21, s7, 1
    s_lshl_b32 s21, s21, 2
    s_and_b32 s22, s20, 3
    s_add_u32 s21, s21, s22
    s_lshr_b32 s22, s7, 1
    s_lshl_b32 s22, s22, 3
    s_lshr_b32 s23, s20, 2
    s_add_u32 s22, s22, s23
    s_lshl_b32 s21, s21, 3
    s_add_u32 s21, s21, s6
    s_mul_i32 s23, s22, {9*36864}
    s_mul_i32 s24, s21, 36864
    s_mul_i32 s25, s6, 4608
    s_waitcnt lgkmcnt(0)''')
    a(f'''s_add_u32 s8, s4, s23
    s_addc_u32 s9, s5, 0
    s_mov_b32 s10, {9*36864}
    s_mov_b32 s11, 0x20000''')
    a.srd(12,4,HNF_SZ,HNF_OFF); a.srd(16,4,GF_SZ,GF_OFF)
    a(f'''v_add_u32 v4, s25, v3
    s_mov_b32 s26, s25''')
    def dma():
        return ['s_mov_b32 m0, s26\ns_mov_b32 exec_hi, 0\nbuffer_load_dwordx4 v4, s[8:11], 0 offen lds\ns_mov_b32 exec_hi, -1']+\
               [f'buffer_load_dwordx4 v4, s[8:11], 0 offen offset:{512+1024*p} lds' for p in range(4)]+\
               [f'v_add_u32 v4, {36864}, v4\ns_add_u32 s26, s26, 36864\ns_cmp_ge_u32 s26, {4*36864}\ns_cselect_b32 s26, s25, s26']
    def hload(k):
        return f's_add_u32 s27, s24, {(k>>2)*4096}\nbuffer_load_dwordx4 {vr(HB+4*k)}, v3, s[12:15], s27 offen offset:{(k&3)*1024}'
    for x in dma(): a(x)
    for k in range(18): a(hload(k))
    for x in dma(): a(x)
    for k in range(18,36): a(hload(k))
    for x in dma(): a(x)
    for x in dma(): a(x)
    a(f'''v_bfe_u32 v5, v1, 4, 1
    v_mul_u32_u24 v5, {144*1024}, v5
    v_and_b32 v6, 15, v1
    v_lshrrev_b32 v7, 5, v1
    v_lshl_add_u32 v6, v7, 4, v6
    v_lshl_add_u32 v5, v6, 4, v5
    s_mul_i32 s28, s21, {2*144*1024}
    s_mul_i32 s29, s22, {9*512}
    s_add_u32 s28, s28, s29
    s_mov_b32 s30, 0xbfb8aa3b
    v_mov_b32 v8, v3
    v_add_u32 v9, 36864, v3
    s_mov_b32 s31, 36864''')
    def epilogue(acc):
        ops=[]
        for j in range(8): ops.append(f'v_mul_f32 v{T+j}, s30, v{acc+j}')
        for j in range(8): ops.append(f'v_exp_f32 v{T+j}, v{T+j}')
        for j in range(8): ops.append(f'v_mul_f32 v{T+8+j}, v{acc+j}, v{acc+8+j}')
        for j in range(8): ops.append(f'v_add_f32 v{T+j}, 1.0, v{T+j}')
        for j in range(8): ops.append(f'v_rcp_f32 v{T+j}, v{T+j}')
        for j in range(8): ops.append(f'v_mul_f32 v{T+8+j}, v{T+8+j}, v{T+j}')
        for j in range(4): ops.append(f'v_cvt_pk_bf16_f32 v{T+16+j}, v{T+8+2*j}, v{T+9+2*j}')
        ops.append(f'buffer_store_dwordx4 {vr(T+16)}, v5, s[16:19], s28 offen\ns_add_u32 s28, s28, 512')
        return ops
    def body(acc, prev, first=False, last=False):
        fill={k:[] for k in range(36)}
        if not first:
            fill[0].append('s_waitcnt vmcnt(5)\ns_barrier')
            d=dma() if 'nodma' not in X else []
            for i,x in enumerate(d): fill[1+i].append(x)
            ep=epilogue(prev) if 'noep' not in X else ['s_nop 0']
            n=len(ep); s0=5; ns=30
            for i,x in enumerate(ep): fill[s0+i*ns//n].append(x)
        else:
            fill[27].append('s_barrier')
        for k in range(36):
            if first:
                after = (35-k) + 10 + (5 if k<18 else 0)
                a(f's_waitcnt vmcnt({after}) lgkmcnt({R-1})')
            else:
                a(f's_waitcnt lgkmcnt({R-1})')
            c = '0' if k==0 else vr(acc,16)
            a(f'v_mfma_f32_32x32x16_bf16 {vr(acc,16)}, {vr(AR+4*(k%R))}, {vr(HB+4*k)}, {c}')
            kn=k+R
            if 'nolds' in X: pass
            elif kn<36: a(f'ds_read_b128 {vr(AR+4*(k%R))}, v8 offset:{kn*1024}')
            else:     a(f'ds_read_b128 {vr(AR+4*(k%R))}, v9 offset:{(kn-36)*1024}')
            for x in fill[k]: a(x)
        a(f'''v_mov_b32 v8, v9
        s_add_u32 s31, s31, 36864
        s_cmp_ge_u32 s31, {4*36864}
        s_cselect_b32 s31, 0, s31
        v_add_u32 v9, s31, v3''')
    if TRACE: a.tp(0)
    a('s_waitcnt vmcnt(51)\ns_barrier')
    if TRACE: a.tp(1)
    for k in range(R): a(f'ds_read_b128 {vr(AR+4*k)}, v8 offset:{k*1024}')
    body(ACC[0],None,first=True)
    if TRACE:
        for it in range(4):
            a.tp(2+2*it); body(ACC[1],ACC[0]); a.tp(3+2*it); body(ACC[0],ACC[1])
        a.tp(10)
    else:
        a('s_mov_b32 s32, 0')
        a(f'Lloop_{name}:')
        body(ACC[1],ACC[0]); body(ACC[0],ACC[1])
        a(f's_add_u32 s32, s32, 1\ns_cmp_lt_u32 s32, 4\ns_cbranch_scc1 Lloop_{name}')
    a('s_nop 7\ns_nop 3')
    ep=epilogue(ACC[0])
    for x in ep: a(x)
    if TRACE:
        a.tp(11); a('s_waitcnt vmcnt(0)'); a.tp(12); a.trace_end(kidx,13,tmp=16)
    if STAMPS: a.stamp_end(kidx,tmp=16)
    a(f'Lend_{name}:\ns_endpgm')
    a.end(name,(256,1,1),512,4*36864,240)
    return 256

def k_gemm2(a, kidx):
    name='gemm2_kernel'
    GB=16; ACC=160; AR=232; R=6
    a.begin(name)
    a(f's_cmp_ge_u32 s2, 256\ns_cbranch_scc1 Lend_{name}')
    if STAMPS: a.stamp_start()
    a(f'''s_load_dwordx2 s[4:5], s[0:1], {KA_WS}
    v_lshrrev_b32 v2, 6, v0
    v_and_b32 v1, 63, v0
    v_lshlrev_b32 v3, 4, v1
    v_readfirstlane_b32 s6, v2
    s_and_b32 s7, s2, 7
    s_lshr_b32 s20, s2, 3
    s_and_b32 s21, s7, 1
    s_lshl_b32 s21, s21, 3
    s_and_b32 s22, s20, 7
    s_add_u32 s21, s21, s22
    s_lshr_b32 s22, s7, 1
    s_lshr_b32 s23, s20, 3
    s_and_b32 s33, s6, 3
    s_lshr_b32 s34, s6, 2
    s_lshl_b32 s24, s22, 2
    s_add_u32 s24, s24, s23
    s_mul_i32 s24, s24, {18*18432}
    s_mul_i32 s25, s6, 4608
    s_lshl_b32 s35, s21, 2
    s_add_u32 s35, s35, s33
    s_mul_i32 s27, s35, {2*144*1024}
    s_mul_i32 s28, s22, {36*1024}
    s_add_u32 s27, s27, s28
    s_mul_i32 s28, s34, {18*1024}
    s_add_u32 s27, s27, s28
    s_waitcnt lgkmcnt(0)''')
    a(f'''s_add_u32 s8, s4, {W2F_OFF:#x}
    s_addc_u32 s9, s5, 0
    s_add_u32 s8, s8, s24
    s_addc_u32 s9, s9, 0
    s_mov_b32 s10, {18*18432}
    s_mov_b32 s11, 0x20000''')
    a.srd(12,4,GF_SZ,GF_OFF); a.srd(16,4,PART_SZ,PART_OFF)
    a(f'''v_add_u32 v4, s25, v3
    v_add_u32 v5, {144*1024}, v3
    s_mul_i32 s29, s34, 9216
    v_add_u32 v6, s29, v3
    v_add_u32 v7, {2*36864}, v6''')
    def loads(i):
        if i>=9: return []
        l=[f's_add_u32 m0, s25, {(i%4)*36864}\ns_mov_b32 s30, {i*36864}\ns_mov_b32 exec_hi, 0\nbuffer_load_dwordx4 v4, s[8:11], s30 offen lds\ns_mov_b32 exec_hi, -1']
        l+=[f'buffer_load_dwordx4 v4, s[8:11], s30 offen offset:{512+1024*p} lds' for p in range(4)]
        for s in range(2):
            for m in range(2):
                pre=f's_add_u32 s31, s27, {2*i*1024}\n' if (s==0 and m==0) else ''
                l.append(pre+f'buffer_load_dwordx4 {vr(GB+16*i+8*s+4*m)}, v{3 if m==0 else 5}, s[12:15], s31 offen offset:{s*1024}')
        return l
    def aread(n):
        i=n//18; f=n%18; s=f//9; t=f%9
        slot=i%4
        return f'ds_read_b128 {vr(AR+4*(n%R))}, v{6+(slot>>1)} offset:{(slot&1)*36864+s*18432+t*1024}'
    for i in range(4):
        for x in loads(i): a(x)
    a('s_waitcnt vmcnt(27)\ns_barrier')
    for n in range(R): a(aread(n))
    BP=8
    for i in range(9):
        fill={f:[] for f in range(18)}
        if i<8:
            last=min(max(3,i+2),8)
            N=4+9*(last-(i+1))
            fill[BP].append(f's_waitcnt vmcnt({N})\ns_barrier')
            if i>=1:
                for q,x in enumerate(loads(i+3)): fill[min(BP+1+q,17)].append(x)
        for f in range(18):
            n=18*i+f; s=f//9; t=f%9
            rem=min(R-1,161-n)
            w=f's_waitcnt lgkmcnt({rem})'
            if f==0 and i>0:
                last=min(max(3,i+2),8)
                w=f's_waitcnt vmcnt({9*(last-i)}) lgkmcnt({rem})'
            a(w)
            for m in range(2):
                acc=ACC+8*t+4*m
                c='0' if (i==0 and s==0) else vr(acc)
                a(f'v_mfma_f32_16x16x32_bf16 {vr(acc)}, {vr(AR+4*(n%R))}, {vr(GB+16*i+8*s+4*m)}, {c}')
            if n+R<162: a(aread(n+R))
            for x in fill[f]: a(x)
    a('s_barrier\ns_nop 7')
    Lk=a.label('Lkh'); Lj=a.label('Lkj')
    a(f'''s_mul_i32 s36, s6, 9216
    v_add_u32 v8, s36, v3
    s_xor_b32 s37, s6, 4
    s_mul_i32 s37, s37, 9216
    v_add_u32 v9, s37, v3
    s_cmp_eq_u32 s34, 0
    s_cbranch_scc0 {Lk}''')
    for t in range(9): a(f'ds_write_b128 v8, {vr(ACC+8*t+4)} offset:{t*1024}')
    a(f's_branch {Lj}\n{Lk}:')
    for t in range(9): a(f'ds_write_b128 v8, {vr(ACC+8*t)} offset:{t*1024}')
    for t in range(9):
        for r in range(4): a(f'v_mov_b32 v{ACC+8*t+r}, v{ACC+8*t+4+r}')
    a(f'{Lj}:\ns_waitcnt lgkmcnt(0)\ns_barrier')
    for t in range(9): a(f'ds_read_b128 {vr(16+4*t)}, v9 offset:{t*1024}')
    a(f'''s_lshl_b32 s38, s22, 6
    s_lshl_b32 s39, s21, 2
    s_add_u32 s38, s38, s39
    s_add_u32 s38, s38, s23
    s_mul_i32 s38, s38, {8*4608}
    s_add_u32 s38, s38, s25
    v_lshlrev_b32 v10, 3, v1''')
    for t in range(9):
        a(f's_waitcnt lgkmcnt({8-t})')
        for r in range(4): a(f'v_add_f32 v{16+4*t+r}, v{16+4*t+r}, v{ACC+8*t+r}')
        a(f'v_cvt_pk_bf16_f32 v{64+2*t}, v{16+4*t}, v{17+4*t}\nv_cvt_pk_bf16_f32 v{65+2*t}, v{18+4*t}, v{19+4*t}')
        if t&1: a(f'buffer_store_dwordx4 {vr(64+2*(t-1))}, v3, s[16:19], s38 offen offset:{(t>>1)*1024}')
    a(f's_add_u32 s38, s38, 4096\nbuffer_store_dwordx2 v[80:81], v10, s[16:19], s38 offen')
    if STAMPS: a.stamp_end(kidx,tmp=16)
    a(f'Lend_{name}:\ns_endpgm')
    a.end(name,(256,1,1),512,4*36864,256)
    return 256

def k_reduce(a, kidx):
    name='reduce_kernel'
    a.begin(name)
    a(f's_cmp_ge_u32 s2, 256\ns_cbranch_scc1 Lend_{name}')
    if STAMPS: a.stamp_start()
    a(f'''s_load_dwordx2 s[4:5], s[0:1], {KA_WS}
    s_load_dwordx2 s[6:7], s[0:1], {KA_OUT}
    v_lshrrev_b32 v2, 6, v0
    v_and_b32 v1, 63, v0
    v_lshlrev_b32 v3, 4, v1
    v_readfirstlane_b32 s20, v2
    v_lshlrev_b32 v4, 3, v1
    s_lshl_b32 s21, s2, 1
    s_add_u32 s21, s21, s20
    s_mul_i32 s22, s21, 4608
    s_and_b32 s23, s21, 7
    s_lshr_b32 s24, s21, 3
    s_and_b32 s25, s24, 3
    s_lshr_b32 s26, s24, 2
    s_and_b32 s27, s23, 3
    s_lshr_b32 s28, s23, 2
    s_lshl_b32 s26, s26, 2
    s_add_u32 s26, s26, s27
    s_lshl_b32 s28, s28, 10
    s_add_u32 s26, s26, s28
    s_mul_i32 s26, s26, 1152
    s_mul_i32 s29, s25, 288
    s_add_u32 s26, s26, s29
    s_and_b32 s25, s25, 1
    s_lshl_b32 s30, s25, 5
    s_add_u32 s30, s30, s26
    s_xor_b32 s25, s25, 1
    s_lshl_b32 s31, s25, 8
    s_add_u32 s31, s31, s26
    v_and_b32 v5, 15, v1
    v_mul_u32_u24 v5, {64*1152}, v5
    v_lshrrev_b32 v6, 4, v1
    v_lshl_add_u32 v7, v6, 3, v5
    v_lshl_add_u32 v6, v6, 4, v5
    s_waitcnt lgkmcnt(0)''')
    a.srd(8,4,PART_SZ,PART_OFF); a.srd(12,4,H_SZ,H_OFF); a.srd(16,6,XSZ)
    for s in range(4):
        a(f's_add_u32 s32, s22, {s*64*8*4608}\ns_add_u32 s33, s32, 4096')
        for p in range(4): a(f'buffer_load_dwordx4 {vr(16+20*s+4*p)}, v3, s[8:11], s32 offen offset:{p*1024}')
        a(f'buffer_load_dwordx2 {vr(32+20*s,2)}, v4, s[8:11], s33 offen')
    for p in range(4): a(f'buffer_load_dwordx4 {vr(96+4*p)}, v6, s[12:15], s30 offen offset:{p*64}')
    a(f'buffer_load_dwordx2 v[112:113], v7, s[12:15], s31 offen')
    a('s_mov_b32 s34, 0xffff0000\ns_waitcnt vmcnt(0)')
    for r in range(18):
        a(f'v_lshlrev_b32 v8, 16, v{16+r}\nv_and_b32 v9, s34, v{16+r}')
        for s in range(1,5):
            a(f'v_lshlrev_b32 v10, 16, v{16+20*s+r}\nv_and_b32 v11, s34, v{16+20*s+r}\nv_add_f32 v8, v8, v10\nv_add_f32 v9, v9, v11')
        PERT=os.environ.get('PERT','')
        if PERT:
            import struct
            kind,val=PERT.split(':'); hx=struct.unpack('<I',struct.pack('<f',float(val)))[0]
            if kind=='s': a(f'v_mul_f32 v8, {hx:#x}, v8\nv_mul_f32 v9, {hx:#x}, v9')
            if kind=='e' and r==1:
                a(f's_cmp_eq_u32 s21, 5\ns_cselect_b32 s35, {hx:#x}, 0\ns_mov_b64 exec, 1\nv_add_f32 v8, s35, v8\ns_mov_b64 exec, -1')
        a(f'v_cvt_pk_bf16_f32 v{16+r}, v8, v9')
    for p in range(4): a(f'buffer_store_dwordx4 {vr(16+4*p)}, v6, s[16:19], s30 offen offset:{p*64}')
    a(f'buffer_store_dwordx2 v[32:33], v7, s[16:19], s31 offen')
    if STAMPS: a.stamp_end(kidx,tmp=40)
    a(f'Lend_{name}:\ns_endpgm')
    a.end(name,(256,1,1),128,0,120)
    return 256

if __name__=='__main__':
    a=Asm(); ns=[]
    ns.append(k_prep(a,0)); ns.append(k_gemm1(a,1)); ns.append(k_gemm2(a,2)); ns.append(k_reduce(a,3))
    open(sys.argv[1],'w').write(a.text())
    print(','.join(map(str,ns)))
```

```python
import sys, os
sys.path.insert(0, os.path.dirname(os.path.abspath(__file__)))
from asmlib import *

STAMPS = os.environ.get('STAMPS','0')=='1'
TRACE = os.environ.get('TRACE','0')=='1'
X = set(os.environ.get('X','').split(','))
W1F_OFF=0x0000000; W1F_SZ=288*36864
W2F_OFF=0x0C00000; W2F_SZ=16*18*18432
RAB_OFF=0x1200000; RAB_SZ=64*32*1152
HNF_OFF=0x1600000; HNF_SZ=64*36864
H_OFF  =0x1A00000; H_SZ=2048*1152
GF_OFF =0x2000000; GF_SZ=128*144*1024
PART_OFF=0x4000000; PART_SZ=4*64*8*4608
XSZ=2048*1152
KA_X=0; KA_CS=8; KA_SS=16; KA_CD=24; KA_SD=32; KA_WG=48; KA_WU=56; KA_WD=64; KA_OUT=72; KA_DBG=80; KA_WS=88

def vr(b,n=4): return f'v[{b}:{b+n-1}]'
def sr(b,n=4): return f's[{b}:{b+n-1}]'

def prep_body(a, U, done):
    Lw2=a.label('Lw2')
    a(f'''s_load_dwordx4 s[24:27], s[0:1], {KA_WG}
    s_load_dwordx2 s[28:29], s[0:1], {KA_WD}
    s_load_dwordx2 s[30:31], s[0:1], {KA_WS}
    s_mul_i32 s22, s20, {U}
    v_lshrrev_b32 v2, 3, v1
    v_and_b32 v3, 7, v1
    v_lshlrev_b32 v4, 4, v1
    s_cmp_ge_u32 s22, 3888
    s_cbranch_scc1 {done}
    s_cmp_ge_u32 s22, 2592
    s_cbranch_scc1 {Lw2}''')
    a(f'''v_lshrrev_b32 v5, 1, v2
    v_and_b32 v5, 1, v5
    v_lshlrev_b32 v5, 1, v5
    v_xor_b32 v5, v5, v3
    v_lshlrev_b32 v5, 4, v5
    v_mul_u32_u24 v6, 9216, v2
    v_add_u32 v5, v5, v6
    v_xor_b32 v6, 64, v5
    s_waitcnt lgkmcnt(0)''')
    a.srd(32,24,576*9216); a.srd(36,26,576*9216); a.srd(40,30,W1F_SZ,W1F_OFF)
    a(f'''s_mul_i32 s44, s22, 1821
    s_lshr_b32 s44, s44, 16
    s_mul_i32 s45, s44, 36
    s_sub_u32 s45, s22, s45
    s_mul_i32 s46, s45, {16*9216}
    s_lshl_b32 s47, s44, 7
    s_add_u32 s46, s46, s47
    s_mov_b32 s48, s21''')
    for u in range(U):
        for m in range(2):
            for p in range(2):
                a(f'''s_mov_b32 m0, s48
                s_add_u32 s49, s46, {(u*16+p*8)*9216}
                s_add_u32 s48, s48, 1024
                buffer_load_dwordx4 v{5+m}, {sr(32+4*m)}, s49 offen lds''')
    a(f'''v_lshrrev_b32 v7, 4, v1
    v_and_b32 v8, 1, v7
    v_lshrrev_b32 v9, 1, v7
    v_and_b32 v10, 15, v1
    v_lshrrev_b32 v11, 2, v10
    v_lshl_add_u32 v11, v9, 3, v11
    v_lshlrev_b32 v11, 7, v11
    v_lshl_add_u32 v11, v8, 11, v11
    v_bfe_u32 v12, v10, 3, 1
    v_lshl_or_b32 v12, v8, 1, v12
    v_lshl_add_u32 v11, v12, 5, v11
    v_and_b32 v12, 1, v10
    v_lshlrev_b32 v12, 4, v12
    v_add_u32 v11, v11, v12
    v_bfe_u32 v12, v10, 1, 1
    v_lshl_add_u32 v11, v12, 3, v11
    v_add_u32 v11, s21, v11
    v_xor_b32 v12, 32, v11
    v_xor_b32 v13, 64, v11
    v_xor_b32 v14, 96, v11
    s_mul_i32 s50, s44, {4*36864}
    s_lshl_b32 s51, s45, 10
    s_add_u32 s50, s50, s51''')
    for u in range(U):
        a(f's_waitcnt vmcnt({4*(U-1-u)+4*u})')
        for cc in range(4):
            d=16+(u*4+cc)*4
            a(f'ds_read_b64_tr_b16 v[{d}:{d+1}], v{11+cc} offset:{u*4096}')
            a(f'ds_read_b64_tr_b16 v[{d+2}:{d+3}], v{11+cc} offset:{u*4096+512}')
        for cc in range(4):
            d=16+(u*4+cc)*4
            a(f's_add_u32 s51, s50, {cc*36864+u*1024}')
            a(f's_waitcnt lgkmcnt({6-2*cc})')
            a(f'buffer_store_dwordx4 {vr(d)}, v4, s[40:43], s51 offen')
    a(f's_branch {done}')
    a(f'{Lw2}:')
    a(f'''v_lshrrev_b32 v5, 1, v2
    v_and_b32 v5, 1, v5
    v_lshlrev_b32 v5, 2, v5
    v_xor_b32 v5, v5, v3
    v_lshlrev_b32 v5, 4, v5
    v_mul_u32_u24 v6, 1152, v2
    v_add_u32 v5, v5, v6
    v_xor_b32 v6, 32, v5
    s_waitcnt lgkmcnt(0)''')
    a.srd(32,28,4608*1152); a.srd(40,30,W2F_SZ,W2F_OFF)
    a(f's_sub_u32 s22, s22, 2592\ns_mov_b32 s48, s21')
    for u in range(U):
        ks=52+2*u; L=53+2*u
        a(f'''s_add_u32 s44, s22, {u}
        s_mul_i32 s{ks}, s44, 7282
        s_lshr_b32 s{ks}, s{ks}, 16
        s_mul_i32 s45, s{ks}, 9
        s_sub_u32 s{L}, s44, s45
        s_mul_i32 s46, s{ks}, {32*1152}
        s_lshl_b32 s47, s{L}, 7
        s_add_u32 s46, s46, s47''')
        for p in range(4):
            a(f'''s_mov_b32 m0, s48
            s_add_u32 s49, s46, {p*8*1152}
            s_add_u32 s48, s48, 1024
            buffer_load_dwordx4 v{5+(p&1)}, s[32:35], s49 offen lds''')
    a(f'''v_lshrrev_b32 v7, 4, v1
    v_and_b32 v10, 15, v1
    v_lshrrev_b32 v11, 2, v10
    v_lshl_add_u32 v11, v7, 3, v11
    v_lshlrev_b32 v11, 7, v11
    v_add_u32 v11, s21, v11
    v_and_b32 v8, 1, v7
    v_bfe_u32 v12, v10, 3, 1
    v_lshl_or_b32 v8, v12, 1, v8
    v_lshlrev_b32 v8, 5, v8
    v_and_b32 v9, 3, v10''')
    for u in range(U):
        ks=52+2*u; L=53+2*u
        a(f'''s_mul_i32 s44, s{ks}, 1821
        s_lshr_b32 s44, s44, 16
        s_mul_i32 s45, s44, 36
        s_sub_u32 s45, s{ks}, s45
        s_mul_i32 s50, s44, {4*18*18432}
        s_cmp_ge_u32 s45, 18
        s_cselect_b32 s46, 18, 0
        s_cselect_b32 s47, 9216, 0
        s_sub_u32 s45, s45, s46
        s_mul_i32 s45, s45, 18432
        s_add_u32 s50, s50, s45
        s_add_u32 s50, s50, s47''')
        a(f's_waitcnt vmcnt({4*(U-1-u)+4*u})')
        for b in range(4):
            d=16+(u*4+b)*4
            sing=2 if b<2 else 6
            a(f'''s_cmp_eq_u32 s{L}, {sing}
            s_cselect_b32 s44, 8, 16
            s_cselect_b32 s45, {32*b}, {64*(b>>1)+8*(b&1)}
            v_mov_b32 v13, s45
            v_mad_u32_u24 v13, v9, s44, v13
            v_xor_b32 v13, v13, v8
            v_add_u32 v13, v13, v11
            ds_read_b64_tr_b16 v[{d}:{d+1}], v13 offset:{u*4096}
            ds_read_b64_tr_b16 v[{d+2}:{d+3}], v13 offset:{u*4096+512}''')
        for b in range(4):
            d=16+(u*4+b)*4
            a(f'''s_lshl_b32 s44, s{L}, 2
            s_add_u32 s44, s44, {b}
            s_mul_i32 s45, s44, 57
            s_lshr_b32 s45, s45, 9
            s_mul_i32 s46, s45, 9
            s_sub_u32 s46, s44, s46
            s_and_b32 s47, s45, 1
            s_sub_u32 s46, s46, s47
            s_cmp_lt_i32 s46, 0
            s_cselect_b32 s46, 8, s46
            s_mul_i32 s45, s45, {18*18432}
            s_lshl_b32 s46, s46, 10
            s_add_u32 s51, s50, s45
            s_add_u32 s51, s51, s46
            s_waitcnt lgkmcnt({6-2*b})
            buffer_store_dwordx4 {vr(d)}, v4, s[40:43], s51 offen''')
    a(f's_branch {done}')

def k_prep(a, kidx):
    name='prep_kernel'; NW=6; U=3; NWG=3888//(NW*U)
    a.begin(name)
    a(f's_cmp_ge_u32 s2, {NWG}\ns_cbranch_scc1 Lend_{name}')
    if STAMPS: a.stamp_start()
    a(f'''v_lshrrev_b32 v2, 6, v0
    v_and_b32 v1, 63, v0
    s_nop 0
    v_readfirstlane_b32 s23, v2
    s_nop 3
    s_mul_i32 s20, s2, {NW}
    s_add_u32 s20, s20, s23
    s_mul_i32 s21, s23, {U*4096}''')
    prep_body(a,U,f'Ldone_{name}')
    a(f'Ldone_{name}:')
    if STAMPS: a.stamp_end(kidx,tmp=16)
    a(f'Lend_{name}:\ns_endpgm')
    a.end(name,(NWG,1,1),NW*64,NW*U*4096,64)
    return NWG

def k_gemm1(a, kidx):
    name='gemm1_kernel'
    HB=16; ACC=[160,176]; AR=192; R=6; T=216
    a.begin(name)
    a(f's_cmp_ge_u32 s2, 256\ns_cbranch_scc1 Lend_{name}')
    if STAMPS: a.stamp_start()
    a(f'''s_load_dwordx2 s[4:5], s[0:1], {KA_WS}
    v_lshrrev_b32 v2, 6, v0
    v_and_b32 v1, 63, v0
    v_lshlrev_b32 v3, 4, v1
    v_readfirstlane_b32 s6, v2
    s_and_b32 s7, s2, 7
    s_lshr_b32 s20, s2, 3
    s_and_b32 s21, s7, 1
    s_lshl_b32 s21, s21, 2
    s_and_b32 s22, s20, 3
    s_add_u32 s21, s21, s22
    s_lshr_b32 s22, s7, 1
    s_lshl_b32 s22, s22, 3
    s_lshr_b32 s23, s20, 2
    s_add_u32 s22, s22, s23
    s_lshl_b32 s21, s21, 3
    s_add_u32 s21, s21, s6
    s_mul_i32 s23, s22, {9*36864}
    s_mul_i32 s24, s21, 36864
    s_mul_i32 s25, s6, 4608
    s_waitcnt lgkmcnt(0)''')
    a(f'''s_add_u32 s8, s4, s23
    s_addc_u32 s9, s5, 0
    s_mov_b32 s10, {9*36864}
    s_mov_b32 s11, 0x20000''')
    a.srd(12,4,HNF_SZ,HNF_OFF); a.srd(16,4,GF_SZ,GF_OFF)
    a(f'''v_add_u32 v4, s25, v3
    s_mov_b32 s26, s25''')
    def dma():
        return ['s_mov_b32 m0, s26\ns_mov_b32 exec_hi, 0\nbuffer_load_dwordx4 v4, s[8:11], 0 offen lds\ns_mov_b32 exec_hi, -1']+\
               [f'buffer_load_dwordx4 v4, s[8:11], 0 offen offset:{512+1024*p} lds' for p in range(4)]+\
               [f'v_add_u32 v4, {36864}, v4\ns_add_u32 s26, s26, 36864\ns_cmp_ge_u32 s26, {4*36864}\ns_cselect_b32 s26, s25, s26']
    def hload(k):
        return f's_add_u32 s27, s24, {(k>>2)*4096}\nbuffer_load_dwordx4 {vr(HB+4*k)}, v3, s[12:15], s27 offen offset:{(k&3)*1024}'
    for x in dma(): a(x)
    for k in range(18): a(hload(k))
    for x in dma(): a(x)
    for k in range(18,36): a(hload(k))
    for x in dma(): a(x)
    for x in dma(): a(x)
    a(f'''v_bfe_u32 v5, v1, 4, 1
    v_mul_u32_u24 v5, {144*1024}, v5
    v_and_b32 v6, 15, v1
    v_lshrrev_b32 v7, 5, v1
    v_lshl_add_u32 v6, v7, 4, v6
    v_lshl_add_u32 v5, v6, 4, v5
    s_mul_i32 s28, s21, {2*144*1024}
    s_mul_i32 s29, s22, {9*512}
    s_add_u32 s28, s28, s29
    s_mov_b32 s30, 0xbfb8aa3b
    v_mov_b32 v8, v3
    v_add_u32 v9, 36864, v3
    s_mov_b32 s31, 36864''')
    def epilogue(acc):
        ops=[]
        for j in range(8): ops.append(f'v_mul_f32 v{T+j}, s30, v{acc+j}')
        for j in range(8): ops.append(f'v_exp_f32 v{T+j}, v{T+j}')
        for j in range(8): ops.append(f'v_mul_f32 v{T+8+j}, v{acc+j}, v{acc+8+j}')
        for j in range(8): ops.append(f'v_add_f32 v{T+j}, 1.0, v{T+j}')
        for j in range(8): ops.append(f'v_rcp_f32 v{T+j}, v{T+j}')
        for j in range(8): ops.append(f'v_mul_f32 v{T+8+j}, v{T+8+j}, v{T+j}')
        for j in range(4): ops.append(f'v_cvt_pk_bf16_f32 v{T+16+j}, v{T+8+2*j}, v{T+9+2*j}')
        ops.append(f'buffer_store_dwordx4 {vr(T+16)}, v5, s[16:19], s28 offen\ns_add_u32 s28, s28, 512')
        return ops
    def body(acc, prev, first=False, last=False):
        fill={k:[] for k in range(36)}
        if not first:
            fill[0].append('s_waitcnt vmcnt(5)\ns_barrier')
            d=dma() if 'nodma' not in X else []
            for i,x in enumerate(d): fill[1+i].append(x)
            ep=epilogue(prev) if 'noep' not in X else ['s_nop 0']
            n=len(ep); s0=5; ns=30
            for i,x in enumerate(ep): fill[s0+i*ns//n].append(x)
        else:
            fill[27].append('s_barrier')
        for k in range(36):
            if first:
                after = (35-k) + 10 + (5 if k<18 else 0)
                a(f's_waitcnt vmcnt({after}) lgkmcnt({R-1})')
            else:
                a(f's_waitcnt lgkmcnt({R-1})')
            c = '0' if k==0 else vr(acc,16)
            a(f'v_mfma_f32_32x32x16_bf16 {vr(acc,16)}, {vr(AR+4*(k%R))}, {vr(HB+4*k)}, {c}')
            kn=k+R
            if 'nolds' in X: pass
            elif kn<36: a(f'ds_read_b128 {vr(AR+4*(k%R))}, v8 offset:{kn*1024}')
            else:     a(f'ds_read_b128 {vr(AR+4*(k%R))}, v9 offset:{(kn-36)*1024}')
            for x in fill[k]: a(x)
        a(f'''v_mov_b32 v8, v9
        s_add_u32 s31, s31, 36864
        s_cmp_ge_u32 s31, {4*36864}
        s_cselect_b32 s31, 0, s31
        v_add_u32 v9, s31, v3''')
    if TRACE: a.tp(0)
    a('s_waitcnt vmcnt(51)\ns_barrier')
    if TRACE: a.tp(1)
    for k in range(R): a(f'ds_read_b128 {vr(AR+4*k)}, v8 offset:{k*1024}')
    body(ACC[0],None,first=True)
    if TRACE:
        for it in range(4):
            a.tp(2+2*it); body(ACC[1],ACC[0]); a.tp(3+2*it); body(ACC[0],ACC[1])
        a.tp(10)
    else:
        a('s_mov_b32 s32, 0')
        a(f'Lloop_{name}:')
        body(ACC[1],ACC[0]); body(ACC[0],ACC[1])
        a(f's_add_u32 s32, s32, 1\ns_cmp_lt_u32 s32, 4\ns_cbranch_scc1 Lloop_{name}')
    a('s_nop 7\ns_nop 3')
    ep=epilogue(ACC[0])
    for x in ep: a(x)
    if TRACE:
        a.tp(11); a('s_waitcnt vmcnt(0)'); a.tp(12); a.trace_end(kidx,13,tmp=16)
    if STAMPS: a.stamp_end(kidx,tmp=16)
    a(f'Lend_{name}:\ns_endpgm')
    a.end(name,(256,1,1),512,4*36864,240)
    return 256

def k_gemm2(a, kidx):
    name='gemm2_kernel'
    GB=16; ACC=160; AR=232; R=6
    a.begin(name)
    a(f's_cmp_ge_u32 s2, 256\ns_cbranch_scc1 Lend_{name}')
    if STAMPS: a.stamp_start()
    a(f'''s_load_dwordx2 s[4:5], s[0:1], {KA_WS}
    v_lshrrev_b32 v2, 6, v0
    v_and_b32 v1, 63, v0
    v_lshlrev_b32 v3, 4, v1
    v_readfirstlane_b32 s6, v2
    s_and_b32 s7, s2, 7
    s_lshr_b32 s20, s2, 3
    s_and_b32 s21, s7, 1
    s_lshl_b32 s21, s21, 3
    s_and_b32 s22, s20, 7
    s_add_u32 s21, s21, s22
    s_lshr_b32 s22, s7, 1
    s_lshr_b32 s23, s20, 3
    s_and_b32 s33, s6, 3
    s_lshr_b32 s34, s6, 2
    s_lshl_b32 s24, s22, 2
    s_add_u32 s24, s24, s23
    s_mul_i32 s24, s24, {18*18432}
    s_mul_i32 s25, s6, 4608
    s_lshl_b32 s35, s21, 2
    s_add_u32 s35, s35, s33
    s_mul_i32 s27, s35, {2*144*1024}
    s_mul_i32 s28, s22, {36*1024}
    s_add_u32 s27, s27, s28
    s_mul_i32 s28, s34, {18*1024}
    s_add_u32 s27, s27, s28
    s_waitcnt lgkmcnt(0)''')
    a(f'''s_add_u32 s8, s4, {W2F_OFF:#x}
    s_addc_u32 s9, s5, 0
    s_add_u32 s8, s8, s24
    s_addc_u32 s9, s9, 0
    s_mov_b32 s10, {18*18432}
    s_mov_b32 s11, 0x20000''')
    a.srd(12,4,GF_SZ,GF_OFF); a.srd(16,4,PART_SZ,PART_OFF)
    a(f'''v_add_u32 v4, s25, v3
    v_add_u32 v5, {144*1024}, v3
    s_mul_i32 s29, s34, 9216
    v_add_u32 v6, s29, v3
    v_add_u32 v7, {2*36864}, v6''')
    def loads(i):
        if i>=9: return []
        l=[f's_add_u32 m0, s25, {(i%4)*36864}\ns_mov_b32 s30, {i*36864}\ns_mov_b32 exec_hi, 0\nbuffer_load_dwordx4 v4, s[8:11], s30 offen lds\ns_mov_b32 exec_hi, -1']
        l+=[f'buffer_load_dwordx4 v4, s[8:11], s30 offen offset:{512+1024*p} lds' for p in range(4)]
        for s in range(2):
            for m in range(2):
                pre=f's_add_u32 s31, s27, {2*i*1024}\n' if (s==0 and m==0) else ''
                l.append(pre+f'buffer_load_dwordx4 {vr(GB+16*i+8*s+4*m)}, v{3 if m==0 else 5}, s[12:15], s31 offen offset:{s*1024}')
        return l
    def aread(n):
        i=n//18; f=n%18; s=f//9; t=f%9
        slot=i%4
        return f'ds_read_b128 {vr(AR+4*(n%R))}, v{6+(slot>>1)} offset:{(slot&1)*36864+s*18432+t*1024}'
    for i in range(4):
        for x in loads(i): a(x)
    if TRACE: a.tp(0)
    a('s_waitcnt vmcnt(27)\ns_barrier')
    for n in range(R): a(aread(n))
    BP=8
    for i in range(9):
        fill={f:[] for f in range(18)}
        if TRACE: a.tp(1+i)
        if i<8:
            last=min(max(3,i+2),8)
            N=4+9*(last-(i+1))
            fill[BP].append(f's_waitcnt vmcnt({N})\ns_barrier')
            if i>=1:
                for q,x in enumerate(loads(i+3)): fill[min(BP+1+q,17)].append(x)
        for f in range(18):
            n=18*i+f; s=f//9; t=f%9
            rem=min(R-1,161-n)
            w=f's_waitcnt lgkmcnt({rem})'
            if f==0 and i>0:
                last=min(max(3,i+2),8)
                w=f's_waitcnt vmcnt({9*(last-i)}) lgkmcnt({rem})'
            a(w)
            for m in range(2):
                acc=ACC+8*t+4*m
                c='0' if (i==0 and s==0) else vr(acc)
                a(f'v_mfma_f32_16x16x32_bf16 {vr(acc)}, {vr(AR+4*(n%R))}, {vr(GB+16*i+8*s+4*m)}, {c}')
            if n+R<162: a(aread(n+R))
            for x in fill[f]: a(x)
    if TRACE: a.tp(10)
    a('s_barrier\ns_nop 7')
    Lk=a.label('Lkh'); Lj=a.label('Lkj')
    a(f'''s_mul_i32 s36, s6, 9216
    v_add_u32 v8, s36, v3
    s_xor_b32 s37, s6, 4
    s_mul_i32 s37, s37, 9216
    v_add_u32 v9, s37, v3
    s_cmp_eq_u32 s34, 0
    s_cbranch_scc0 {Lk}''')
    for t in range(9): a(f'ds_write_b128 v8, {vr(ACC+8*t+4)} offset:{t*1024}')
    a(f's_branch {Lj}\n{Lk}:')
    for t in range(9): a(f'ds_write_b128 v8, {vr(ACC+8*t)} offset:{t*1024}')
    for t in range(9):
        for r in range(4): a(f'v_mov_b32 v{ACC+8*t+r}, v{ACC+8*t+4+r}')
    a(f'{Lj}:\ns_waitcnt lgkmcnt(0)\ns_barrier')
    for t in range(9): a(f'ds_read_b128 {vr(16+4*t)}, v9 offset:{t*1024}')
    a(f'''s_lshl_b32 s38, s22, 6
    s_lshl_b32 s39, s21, 2
    s_add_u32 s38, s38, s39
    s_add_u32 s38, s38, s23
    s_mul_i32 s38, s38, {8*4608}
    s_add_u32 s38, s38, s25
    v_lshlrev_b32 v10, 3, v1''')
    for t in range(9):
        a(f's_waitcnt lgkmcnt({8-t})')
        for r in range(4): a(f'v_add_f32 v{16+4*t+r}, v{16+4*t+r}, v{ACC+8*t+r}')
        a(f'v_cvt_pk_bf16_f32 v{64+2*t}, v{16+4*t}, v{17+4*t}\nv_cvt_pk_bf16_f32 v{65+2*t}, v{18+4*t}, v{19+4*t}')
        if t&1: a(f'buffer_store_dwordx4 {vr(64+2*(t-1))}, v3, s[16:19], s38 offen offset:{(t>>1)*1024}')
    a(f's_add_u32 s38, s38, 4096\nbuffer_store_dwordx2 v[80:81], v10, s[16:19], s38 offen')
    if TRACE:
        a.tp(11); a('s_waitcnt vmcnt(0)'); a.tp(12); a.trace_end(kidx,13,tmp=16)
    if STAMPS: a.stamp_end(kidx,tmp=16)
    a(f'Lend_{name}:\ns_endpgm')
    a.end(name,(256,1,1),512,4*36864,256)
    return 256

def k_reduce(a, kidx):
    name='reduce_kernel'
    a.begin(name)
    a(f's_cmp_ge_u32 s2, 256\ns_cbranch_scc1 Lend_{name}')
    if STAMPS: a.stamp_start()
    a(f'''s_load_dwordx2 s[4:5], s[0:1], {KA_WS}
    s_load_dwordx2 s[6:7], s[0:1], {KA_OUT}
    v_lshrrev_b32 v2, 6, v0
    v_and_b32 v1, 63, v0
    v_lshlrev_b32 v3, 4, v1
    v_readfirstlane_b32 s20, v2
    v_lshlrev_b32 v4, 3, v1
    s_lshl_b32 s21, s2, 1
    s_add_u32 s21, s21, s20
    s_mul_i32 s22, s21, 4608
    s_and_b32 s23, s21, 7
    s_lshr_b32 s24, s21, 3
    s_and_b32 s25, s24, 3
    s_lshr_b32 s26, s24, 2
    s_and_b32 s27, s23, 3
    s_lshr_b32 s28, s23, 2
    s_lshl_b32 s26, s26, 2
    s_add_u32 s26, s26, s27
    s_lshl_b32 s28, s28, 10
    s_add_u32 s26, s26, s28
    s_mul_i32 s26, s26, 1152
    s_mul_i32 s29, s25, 288
    s_add_u32 s26, s26, s29
    s_and_b32 s25, s25, 1
    s_lshl_b32 s30, s25, 5
    s_add_u32 s30, s30, s26
    s_xor_b32 s25, s25, 1
    s_lshl_b32 s31, s25, 8
    s_add_u32 s31, s31, s26
    v_and_b32 v5, 15, v1
    v_mul_u32_u24 v5, {64*1152}, v5
    v_lshrrev_b32 v6, 4, v1
    v_lshl_add_u32 v7, v6, 3, v5
    v_lshl_add_u32 v6, v6, 4, v5
    s_waitcnt lgkmcnt(0)''')
    a.srd(8,4,PART_SZ,PART_OFF); a.srd(12,4,H_SZ,H_OFF); a.srd(16,6,XSZ)
    if TRACE: a.tp(0)
    for s in range(4):
        a(f's_add_u32 s32, s22, {s*64*8*4608}\ns_add_u32 s33, s32, 4096')
        for p in range(4): a(f'buffer_load_dwordx4 {vr(16+20*s+4*p)}, v3, s[8:11], s32 offen offset:{p*1024}')
        a(f'buffer_load_dwordx2 {vr(32+20*s,2)}, v4, s[8:11], s33 offen')
    for p in range(4): a(f'buffer_load_dwordx4 {vr(96+4*p)}, v6, s[12:15], s30 offen offset:{p*64}')
    a(f'buffer_load_dwordx2 v[112:113], v7, s[12:15], s31 offen')
    if TRACE: a.tp(1)
    a('s_mov_b32 s34, 0xffff0000\ns_waitcnt vmcnt(0)')
    if TRACE: a.tp(2)
    for r in range(18):
        a(f'v_lshlrev_b32 v8, 16, v{16+r}\nv_and_b32 v9, s34, v{16+r}')
        for s in range(1,5):
            a(f'v_lshlrev_b32 v10, 16, v{16+20*s+r}\nv_and_b32 v11, s34, v{16+20*s+r}\nv_add_f32 v8, v8, v10\nv_add_f32 v9, v9, v11')
        PERT=os.environ.get('PERT','')
        if PERT:
            import struct
            kind,val=PERT.split(':'); hx=struct.unpack('<I',struct.pack('<f',float(val)))[0]
            if kind=='s': a(f'v_mul_f32 v8, {hx:#x}, v8\nv_mul_f32 v9, {hx:#x}, v9')
            if kind=='e' and r==1:
                a(f's_cmp_eq_u32 s21, 5\ns_cselect_b32 s35, {hx:#x}, 0\ns_mov_b64 exec, 1\nv_add_f32 v8, s35, v8\ns_mov_b64 exec, -1')
        a(f'v_cvt_pk_bf16_f32 v{16+r}, v8, v9')
    for p in range(4): a(f'buffer_store_dwordx4 {vr(16+4*p)}, v6, s[16:19], s30 offen offset:{p*64}')
    a(f'buffer_store_dwordx2 v[32:33], v7, s[16:19], s31 offen')
    if TRACE:
        a.tp(3); a('s_waitcnt vmcnt(0)'); a.tp(4); a.trace_end(kidx,5,tmp=40)
    if STAMPS: a.stamp_end(kidx,tmp=40)
    a(f'Lend_{name}:\ns_endpgm')
    a.end(name,(256,1,1),128,0,120)
    return 256

if __name__=='__main__':
    a=Asm(); ns=[]
    ns.append(k_prep(a,0)); ns.append(k_gemm1(a,1)); ns.append(k_gemm2(a,2)); ns.append(k_reduce(a,3))
    open(sys.argv[1],'w').write(a.text())
    print(','.join(map(str,ns)))
```

```python
import sys, os
sys.path.insert(0, os.path.dirname(os.path.abspath(__file__)))
from asmlib import *

STAMPS = os.environ.get('STAMPS','0')=='1'
TRACE = os.environ.get('TRACE','0')=='1'
X = set(os.environ.get('X','').split(','))
W1F_OFF=0x0000000; W1F_SZ=288*36864
W2F_OFF=0x0C00000; W2F_SZ=16*18*18432
RAB_OFF=0x1200000; RAB_SZ=64*32*1152
HNF_OFF=0x1600000; HNF_SZ=128*18432
H_OFF  =0x1A00000; H_SZ=2048*1152
GF_OFF =0x2000000; GF_SZ=128*144*1024
PART_OFF=0x4000000; PART_SZ=4*64*8*4608
XSZ=2048*1152
KA_X=0; KA_CS=8; KA_SS=16; KA_CD=24; KA_SD=32; KA_WG=48; KA_WU=56; KA_WD=64; KA_OUT=72; KA_DBG=80; KA_WS=88
NUNITS=3888
MM='v_mfma_f32_16x16x32_bf16'

def vr(b,n=4): return f'v[{b}:{b+n-1}]'
def sr(b,n=4): return f's[{b}:{b+n-1}]'

def prep_body(a, U, done, limit=NUNITS):
    Lw2=a.label('Lw2')
    a(f'''s_load_dwordx4 s[24:27], s[0:1], {KA_WG}
    s_load_dwordx2 s[28:29], s[0:1], {KA_WD}
    s_load_dwordx2 s[30:31], s[0:1], {KA_WS}
    v_lshrrev_b32 v2, 3, v1
    v_and_b32 v3, 7, v1
    v_lshlrev_b32 v4, 4, v1
    v_lshrrev_b32 v5, 1, v2
    v_and_b32 v5, 1, v5
    v_lshlrev_b32 v5, 2, v5
    v_xor_b32 v5, v5, v3
    v_lshlrev_b32 v5, 4, v5
    v_lshrrev_b32 v7, 4, v1
    v_and_b32 v10, 15, v1
    v_lshrrev_b32 v11, 2, v10
    v_lshl_add_u32 v11, v7, 3, v11
    v_lshlrev_b32 v11, 7, v11
    v_add_u32 v11, s21, v11
    v_and_b32 v8, 1, v7
    v_bfe_u32 v12, v10, 3, 1
    v_lshl_or_b32 v8, v12, 1, v8
    v_lshlrev_b32 v8, 5, v8
    v_and_b32 v9, 3, v10
    s_waitcnt lgkmcnt(0)
    s_cmp_ge_u32 s22, {limit}
    s_cbranch_scc1 {done}
    s_cmp_ge_u32 s22, 2592
    s_cbranch_scc1 {Lw2}''')
    a(f'''v_mul_u32_u24 v6, 9216, v2
    v_add_u32 v5, v5, v6
    v_xor_b32 v6, 32, v5
    s_mul_i32 s44, s22, 3641
    s_lshr_b32 s44, s44, 16
    s_mul_i32 s45, s44, 18
    s_sub_u32 s45, s22, s45
    s_and_b32 s47, s44, 1
    s_lshr_b32 s44, s44, 1
    s_cmp_eq_u32 s47, 0
    s_cselect_b32 s32, s24, s26
    s_cselect_b32 s33, s25, s27
    s_mov_b32 s34, {576*9216}
    s_mov_b32 s35, 0x20000''')
    a.srd(40,30,W1F_SZ,W1F_OFF)
    a(f'''s_mul_i32 s46, s45, {32*9216}
    s_lshl_b32 s49, s44, 7
    s_add_u32 s46, s46, s49
    s_mov_b32 s48, s21''')
    for u in range(U):
        for p in range(4):
            a(f'''s_mov_b32 m0, s48
            s_add_u32 s49, s46, {(u*32+p*8)*9216}
            s_add_u32 s48, s48, 1024
            buffer_load_dwordx4 v{5+(p&1)}, s[32:35], s49 offen lds''')
    a(f'''v_lshl_or_b32 v12, v9, 3, v8
    v_add_u32 v12, v12, v11
    v_xor_b32 v13, 32, v12
    v_xor_b32 v14, 64, v12
    v_xor_b32 v15, 96, v12
    s_mul_i32 s50, s44, {4*36864}
    s_mul_i32 s47, s47, 3072
    s_add_u32 s50, s50, s47''')
    for u in range(U):
        a(f'''s_add_u32 s46, s45, {u}
        s_mul_i32 s49, s46, 43
        s_lshr_b32 s49, s49, 7
        s_mul_i32 s49, s49, 3
        s_add_u32 s46, s46, s49
        s_lshl_b32 s46, s46, 10
        s_add_u32 s46, s46, s50''')
        a(f's_waitcnt vmcnt({4*(U-1)})')
        for cc in range(4):
            d=16+(u*4+cc)*4
            a(f'ds_read_b64_tr_b16 v[{d}:{d+1}], v{12+cc} offset:{u*4096}')
            a(f'ds_read_b64_tr_b16 v[{d+2}:{d+3}], v{12+cc} offset:{u*4096+512}')
        for cc in range(4):
            d=16+(u*4+cc)*4
            a(f's_add_u32 s51, s46, {cc*36864}')
            a(f's_waitcnt lgkmcnt({6-2*cc})')
            a(f'buffer_store_dwordx4 {vr(d)}, v4, s[40:43], s51 offen')
    a(f's_branch {done}')
    a(f'{Lw2}:')
    a(f'''v_mul_u32_u24 v6, 1152, v2
    v_add_u32 v5, v5, v6
    v_xor_b32 v6, 32, v5''')
    a.srd(32,28,4608*1152); a.srd(40,30,W2F_SZ,W2F_OFF)
    a(f's_sub_u32 s22, s22, 2592\ns_mov_b32 s48, s21')
    for u in range(U):
        ks=52+2*u; L=53+2*u
        a(f'''s_add_u32 s44, s22, {u}
        s_mul_i32 s{ks}, s44, 7282
        s_lshr_b32 s{ks}, s{ks}, 16
        s_mul_i32 s45, s{ks}, 9
        s_sub_u32 s{L}, s44, s45
        s_mul_i32 s46, s{ks}, {32*1152}
        s_lshl_b32 s47, s{L}, 7
        s_add_u32 s46, s46, s47''')
        for p in range(4):
            a(f'''s_mov_b32 m0, s48
            s_add_u32 s49, s46, {p*8*1152}
            s_add_u32 s48, s48, 1024
            buffer_load_dwordx4 v{5+(p&1)}, s[32:35], s49 offen lds''')
    for u in range(U):
        ks=52+2*u; L=53+2*u
        a(f'''s_mul_i32 s44, s{ks}, 1821
        s_lshr_b32 s44, s44, 16
        s_mul_i32 s45, s44, 36
        s_sub_u32 s45, s{ks}, s45
        s_mul_i32 s50, s44, {4*18*18432}
        s_cmp_ge_u32 s45, 18
        s_cselect_b32 s46, 18, 0
        s_cselect_b32 s47, 9216, 0
        s_sub_u32 s45, s45, s46
        s_mul_i32 s45, s45, 18432
        s_add_u32 s50, s50, s45
        s_add_u32 s50, s50, s47''')
        a(f's_waitcnt vmcnt({4*(U-1)})')
        for b in range(4):
            d=16+(u*4+b)*4
            sing=2 if b<2 else 6
            a(f'''s_cmp_eq_u32 s{L}, {sing}
            s_cselect_b32 s44, 8, 16
            s_cselect_b32 s45, {32*(b&1)}, {8*(b&1)}
            s_add_u32 s45, s45, {64*(b>>1)}
            v_mov_b32 v13, s45
            v_mad_u32_u24 v13, v9, s44, v13
            v_xor_b32 v13, v13, v8
            v_add_u32 v13, v13, v11
            ds_read_b64_tr_b16 v[{d}:{d+1}], v13 offset:{u*4096}
            ds_read_b64_tr_b16 v[{d+2}:{d+3}], v13 offset:{u*4096+512}''')
        for b in range(4):
            d=16+(u*4+b)*4
            a(f'''s_lshl_b32 s44, s{L}, 2
            s_add_u32 s44, s44, {b}
            s_mul_i32 s45, s44, 57
            s_lshr_b32 s45, s45, 9
            s_mul_i32 s46, s45, 9
            s_sub_u32 s46, s44, s46
            s_and_b32 s47, s45, 1
            s_sub_u32 s46, s46, s47
            s_cmp_lt_i32 s46, 0
            s_cselect_b32 s46, 8, s46
            s_mul_i32 s45, s45, {18*18432}
            s_lshl_b32 s46, s46, 10
            s_add_u32 s51, s50, s45
            s_add_u32 s51, s51, s46
            s_waitcnt lgkmcnt({6-2*b})
            buffer_store_dwordx4 {vr(d)}, v4, s[40:43], s51 offen''')
    a(f's_branch {done}')

def red_q(a, v, t):
    a(f'''v_mov_b32 v{t}, v{v}
    s_nop 1
    v_permlane32_swap_b32 v{t}, v{v}
    s_nop 0
    v_add_f32 v{v}, v{v}, v{t}
    v_mov_b32 v{t}, v{v}
    s_nop 1
    v_permlane16_swap_b32 v{t}, v{v}
    s_nop 0
    v_add_f32 v{v}, v{v}, v{t}''')

def ln_scale(a, sm, sq, t):
    a(f'''v_mul_f32 v{sm}, 0x3ae38e39, v{sm}
    v_mul_f32 v{sq}, 0x3ae38e39, v{sq}
    v_fma_f32 v{sq}, -v{sm}, v{sm}, v{sq}
    v_max_f32 v{sq}, 0, v{sq}
    v_cvt_pk_bf16_f32 v{sq}, v{sq}, v{sq}
    v_lshlrev_b32 v{sq}, 16, v{sq}
    v_add_f32 v{sq}, 0x3727c5ac, v{sq}
    v_cvt_pk_bf16_f32 v{sq}, v{sq}, v{sq}
    v_lshlrev_b32 v{sq}, 16, v{sq}
    v_sqrt_f32 v{sq}, v{sq}
    s_nop 0
    v_cvt_pk_bf16_f32 v{sq}, v{sq}, v{sq}
    v_lshlrev_b32 v{sq}, 16, v{sq}
    v_rcp_f32 v{sq}, v{sq}
    s_nop 0''')

def k_fnet1(a, kidx, u0, u1):
    name='fnet1_kernel'; NW=6; U=3; NF=192
    NP=(u1-u0+NW*U-1)//(NW*U); NWG=NF+NP
    BB=16; RB=88; AR=120; ACC=144; ST=73728
    a.begin(name)
    a(f's_cmp_ge_u32 s2, {NWG}\ns_cbranch_scc1 Lend_{name}')
    if STAMPS: a.stamp_start()
    a(f'''v_lshrrev_b32 v2, 6, v0
    v_and_b32 v1, 63, v0
    s_nop 0
    v_readfirstlane_b32 s23, v2
    s_cmp_lt_u32 s2, {NF}
    s_cbranch_scc1 Lf_{name}
    s_sub_u32 s20, s2, {NF}
    s_mul_i32 s20, s20, {NW}
    s_add_u32 s20, s20, s23
    s_mul_i32 s22, s20, {U}
    s_add_u32 s22, s22, {u0}
    s_mul_i32 s21, s23, {U*4096}''')
    prep_body(a,U,f'Ldone_{name}',u1)
    a(f'Lf_{name}:')
    a(f'''s_load_dwordx4 s[4:7], s[0:1], {KA_X}
    s_load_dwordx4 s[8:11], s[0:1], {KA_SS}
    s_load_dwordx2 s[12:13], s[0:1], {KA_SD}
    s_load_dwordx2 s[14:15], s[0:1], {KA_WS}
    s_and_b32 s24, s2, 31
    s_lshr_b32 s25, s2, 5
    s_mul_i32 s26, s25, 6
    s_add_u32 s26, s26, s23
    v_and_b32 v2, 15, v1
    v_lshrrev_b32 v3, 4, v1
    v_lshrrev_b32 v4, 3, v1
    v_and_b32 v5, 7, v1
    v_xor_b32 v5, v5, v3
    v_lshlrev_b32 v5, 4, v5
    v_mul_u32_u24 v4, {32*1152}, v4
    v_add_u32 v4, v4, v5
    v_xor_b32 v5, 64, v4
    s_and_b32 s27, s23, 1
    s_lshr_b32 s28, s23, 1
    s_mul_i32 s29, s27, {36*1024}
    s_mul_i32 s30, s28, {3*1024}
    s_add_u32 s29, s29, s30
    s_mul_i32 s30, s27, {4*8*32*1152}
    s_mul_i32 s31, s28, 384
    s_add_u32 s30, s30, s31
    s_mul_i32 s31, s24, 1152
    s_add_u32 s30, s30, s31
    s_waitcnt lgkmcnt(0)''')
    a.srd(16,4,XSZ)
    if TRACE: a.tp(0)
    for drg in range(4):
        for dcg in range(3):
            a(f'''s_add_u32 m0, s29, {(drg*9+dcg)*1024}
            s_add_u32 s32, s30, {drg*8*32*1152+dcg*128}
            buffer_load_dwordx4 v{4+(drg&1)}, s[16:19], s32 offen lds''')
    a(f'''s_cmp_lt_u32 s26, 18
    s_cselect_b32 s34, s10, s12
    s_cselect_b32 s35, s11, s13
    s_cselect_b32 s33, 0, 18
    s_sub_u32 s33, s26, s33
    s_mul_i32 s33, s33, {16*1152}
    s_add_u32 s34, s34, s33
    s_addc_u32 s35, s35, 0
    s_add_u32 s36, s10, {288*1152}
    s_addc_u32 s37, s11, 0
    s_cmp_eq_u32 s26, 18
    s_cselect_b32 s36, s36, s34
    s_cselect_b32 s37, s37, s35
    v_mov_b32 v6, s34
    v_mov_b32 v7, s35
    v_mov_b32 v8, s36
    v_mov_b32 v9, s37
    v_cmp_eq_u32 vcc, 0, v2
    v_mul_u32_u24 v10, 1152, v2
    v_lshl_add_u32 v10, v3, 4, v10
    v_cndmask_b32 v6, v6, v8, vcc
    v_cndmask_b32 v7, v7, v9, vcc
    v_add_co_u32 v6, vcc, v6, v10
    s_nop 1
    v_addc_co_u32 v7, vcc, 0, v7, vcc''')
    for ks in range(18):
        a(f'global_load_dwordx4 {vr(BB+4*ks)}, v[6:7], off offset:{64*ks}')
    if TRACE: a.tp(1)
    a(f'''v_lshlrev_b32 v10, 17, v2
    v_lshl_add_u32 v10, v3, 3, v10''')
    for Tr in range(4):
        if Tr<2:
            a(f'v_add_u32 v11, {Tr*16*32*4096}, v10\nv_mov_b32 v8, s6\nv_mov_b32 v9, s7')
        elif Tr==3:
            a(f'v_add_u32 v11, {16*32*4096}, v10\nv_mov_b32 v8, s8\nv_mov_b32 v9, s9')
        else:
            a(f'''v_cmp_eq_u32 vcc, 0, v2
            v_add_u32 v12, {32*32*4096}, v10
            v_mov_b32 v8, s8
            v_mov_b32 v9, s9
            v_mov_b32 v13, s6
            v_mov_b32 v14, s7
            v_cndmask_b32 v11, v10, v12, vcc
            v_cndmask_b32 v8, v8, v13, vcc
            v_cndmask_b32 v9, v9, v14, vcc''')
        a('v_add_co_u32 v8, vcc, v8, v11\ns_nop 1\nv_addc_co_u32 v9, vcc, 0, v9, vcc')
        for j in range(2):
            for hh in range(2):
                d=RB+8*Tr+4*j+2*hh
                a(f'global_load_dwordx2 v[{d}:{d+1}], v[8:9], off offset:{64*j+32*hh}')
    if TRACE: a.tp(2)
    a(f'''v_lshrrev_b32 v10, 1, v2
    v_xor_b32 v10, v10, v3
    v_lshlrev_b32 v10, 4, v10
    v_and_b32 v11, 7, v2
    v_lshl_add_u32 v10, v11, 7, v10
    v_lshrrev_b32 v11, 3, v2
    v_mul_u32_u24 v11, 9216, v11
    v_add_u32 v10, v10, v11
    v_xor_b32 v11, 64, v10
    s_waitcnt vmcnt(34)
    s_barrier''')
    if TRACE: a.tp(3)
    Ls=a.label('Lnostat')
    a(f'''s_cmp_ge_u32 s23, 4
    s_cbranch_scc1 {Ls}
    s_mul_i32 s33, s23, 18432
    v_add_u32 v12, s33, v10
    v_add_u32 v13, s33, v11
    v_mov_b32 v{ACC}, 0
    v_mov_b32 v{ACC+1}, 0
    v_mov_b32 v{ACC+2}, 0
    v_mov_b32 v{ACC+3}, 0
    v_mov_b32 v15, 0x3f803f80''')
    for ks in range(6): a(f'ds_read_b128 {vr(AR+4*ks)}, v{12+(ks&1)} offset:{(ks>>1)*1024}')
    for ks in range(18):
        a(f's_waitcnt lgkmcnt({min(5,17-ks)})')
        b=AR+4*(ks%6)
        for r in range(4):
            a(f'v_dot2c_f32_bf16 v{ACC+(r&1)}, v{b+r}, v15\nv_dot2c_f32_bf16 v{ACC+2+(r&1)}, v{b+r}, v{b+r}')
        if ks+6<18: a(f'ds_read_b128 {vr(b)}, v{12+(ks&1)} offset:{((ks+6)>>1)*1024}')
    a(f's_nop 2\nv_add_f32 v{ACC}, v{ACC}, v{ACC+1}\nv_add_f32 v{ACC+2}, v{ACC+2}, v{ACC+3}')
    red_q(a,ACC,14); red_q(a,ACC+2,14)
    ln_scale(a,ACC,ACC+2,14)
    a(f'''s_lshl_b32 s33, s23, 6
    v_lshl_add_u32 v12, v2, 2, s33
    v_add_u32 v12, {ST}, v12
    ds_write_b32 v12, v{ACC+2}
    ds_write_b32 v12, v{ACC} offset:256
    {Ls}:''')
    if TRACE: a.tp(4)
    for r in range(4): a(f'v_mov_b32 v{ACC+20+r}, 0x3f803f80')
    def ard(n):
        ks=n//4; T=n%4
        return f'ds_read_b128 {vr(AR+4*(n%6))}, v{10+(ks&1)} offset:{T*18432+(ks>>1)*1024}'
    a('s_waitcnt lgkmcnt(0)')
    for n in range(6): a(ard(n))
    for n in range(72):
        ks=n//4; T=n%4
        w=f'lgkmcnt({min(5,71-n)})'
        if T==0: w=f'vmcnt({16+17-ks}) '+w
        a('s_waitcnt '+w)
        c='0' if ks==0 else vr(ACC+4*T)
        a(f'{MM} {vr(ACC+4*T)}, {vr(AR+4*(n%6))}, {vr(BB+4*ks)}, {c}')
        if n+6<72: a(ard(n+6))
        if T==3:
            c='0' if ks==0 else vr(ACC+16)
            a(f'{MM} {vr(ACC+16)}, {vr(ACC+20)}, {vr(BB+4*ks)}, {c}')
    if TRACE: a.tp(5)
    a(f'''s_barrier
    v_lshlrev_b32 v12, 4, v3
    v_add_u32 v12, {ST}, v12''')
    for T in range(4):
        a(f'ds_read_b128 {vr(BB+8*T)}, v12 offset:{64*T}\nds_read_b128 {vr(BB+8*T+4)}, v12 offset:{256+64*T}')
    a.srd(20,14,RAB_SZ,RAB_OFF)
    a(f'''s_lshr_b32 s33, s24, 1
    s_and_b32 s33, s33, 3
    s_xor_b32 s33, s33, s26
    s_lshl_b32 s33, s33, 5
    s_mul_i32 s36, s24, 1152
    s_add_u32 s33, s33, s36
    v_mul_u32_u24 v13, 36864, v2
    v_lshl_add_u32 v13, v3, 3, v13''')
    for T in range(4):
        a(f's_waitcnt lgkmcnt({6-2*T})')
        for i in range(4):
            a(f'v_fma_f32 v{ACC+4*T+i}, -v{BB+8*T+4+i}, v{ACC+16}, v{ACC+4*T+i}')
        for i in range(4):
            a(f'v_mul_f32 v{ACC+4*T+i}, v{ACC+4*T+i}, v{BB+8*T+i}')
        a(f'v_cvt_pk_bf16_f32 v{AR+2*T}, v{ACC+4*T}, v{ACC+4*T+1}\nv_cvt_pk_bf16_f32 v{AR+2*T+1}, v{ACC+4*T+2}, v{ACC+4*T+3}')
    if TRACE: a.tp(6)
    a('s_waitcnt vmcnt(0)\ns_nop 0')
    if TRACE: a.tp(7)
    for Tr in range(4):
        a(f'{MM} {vr(ACC+4*Tr)}, {vr(AR)}, {vr(RB+8*Tr)}, 0')
        a(f'{MM} {vr(ACC+4*Tr)}, {vr(AR+4)}, {vr(RB+8*Tr+4)}, {vr(ACC+4*Tr)}')
    a('s_nop 1')
    for Tr in range(4):
        if Tr==3: a('s_nop 0')
        a(f'''v_cvt_pk_bf16_f32 v{BB+2*Tr}, v{ACC+4*Tr}, v{ACC+4*Tr+1}
        v_cvt_pk_bf16_f32 v{BB+2*Tr+1}, v{ACC+4*Tr+2}, v{ACC+4*Tr+3}
        s_add_u32 s36, s33, {Tr*16*36864}
        buffer_store_dwordx2 v[{BB+2*Tr}:{BB+2*Tr+1}], v13, s[20:23], s36 offen''')
    if TRACE:
        a.tp(8); a('s_waitcnt vmcnt(0)'); a.tp(9); a.trace_end(kidx,10,tmp=32)
    a(f'Ldone_{name}:')
    if STAMPS: a.stamp_end(kidx,tmp=16)
    a(f'Lend_{name}:\ns_endpgm')
    a.end(name,(NWG,1,1),NW*64,ST+512,168)
    return NWG

def k_fnet2(a, kidx, u0, u1):
    name='fnet2_kernel'; NW=9; U=3; NF=128
    NP=(u1-u0+NW*U-1)//(NW*U); NWG=NF+NP
    YS=73728; YR=2320; PS=YS+16*YR
    a.begin(name)
    a(f's_cmp_ge_u32 s2, {NWG}\ns_cbranch_scc1 Lend_{name}')
    if STAMPS: a.stamp_start()
    a(f'''v_lshrrev_b32 v2, 6, v0
    v_and_b32 v1, 63, v0
    s_nop 0
    v_readfirstlane_b32 s23, v2
    s_cmp_lt_u32 s2, {NF}
    s_cbranch_scc1 Lf_{name}
    s_sub_u32 s20, s2, {NF}
    s_mul_i32 s20, s20, {NW}
    s_add_u32 s20, s20, s23
    s_mul_i32 s22, s20, {U}
    s_add_u32 s22, s22, {u0}
    s_mul_i32 s21, s23, {U*4096}''')
    prep_body(a,U,f'Ldone_{name}',u1)
    a(f'Lf_{name}:')
    a(f'''s_load_dwordx4 s[4:7], s[0:1], {KA_X}
    s_load_dwordx2 s[8:9], s[0:1], {KA_SS}
    s_load_dwordx2 s[14:15], s[0:1], {KA_WS}
    s_and_b32 s24, s2, 1
    s_lshl_b32 s24, s24, 5
    s_lshr_b32 s25, s2, 2
    s_add_u32 s24, s24, s25
    s_lshr_b32 s25, s2, 1
    s_and_b32 s25, s25, 1
    s_sub_u32 s26, 64, s24
    s_min_u32 s26, s26, s24
    s_and_b32 s27, s26, 31
    s_cmp_eq_u32 s27, 0
    s_cselect_b32 s27, 0, 32
    s_cselect_b32 s28, 0, -1
    s_add_u32 s27, s27, s26
    s_cmp_gt_u32 s24, 32
    s_cselect_b32 s29, 0x80008000, 0
    s_xor_b32 s30, s29, 0x80008000
    v_and_b32 v2, 15, v1
    v_lshrrev_b32 v3, 4, v1
    v_lshlrev_b32 v4, 4, v1
    s_mul_i32 s31, s26, 36864
    s_mul_i32 s32, s27, 36864
    s_lshl_b32 s33, s23, 12
    s_add_u32 s31, s31, s33
    s_add_u32 s32, s32, s33
    s_lshl_b32 s34, s25, 10
    s_add_u32 s34, s34, s24
    s_waitcnt lgkmcnt(0)''')
    a.srd(16,14,RAB_SZ,RAB_OFF)
    a('s_mov_b32 m0, s33\ns_nop 0')
    if TRACE: a.tp(0)
    for p in range(4): a(f'buffer_load_dwordx4 v4, s[16:19], s31 offen offset:{p*1024} lds')
    a('s_add_u32 m0, s33, 36864\ns_nop 0')
    for p in range(4): a(f'buffer_load_dwordx4 v4, s[16:19], s32 offen offset:{p*1024} lds')
    a.srd(36,6,2048*4096); a.srd(40,8,2048*4096); a.srd(44,4,XSZ)
    a(f'''v_lshlrev_b32 v5, 18, v2
    v_lshl_add_u32 v5, v3, 3, v5
    s_lshl_b32 s35, s34, 12
    buffer_load_dwordx2 v[16:17], v5, s[36:39], s35 offen
    buffer_load_dwordx2 v[18:19], v5, s[36:39], s35 offen offset:32
    buffer_load_dwordx2 v[20:21], v5, s[40:43], s35 offen
    buffer_load_dwordx2 v[22:23], v5, s[40:43], s35 offen offset:32
    v_mul_u32_u24 v6, {64*1152}, v2
    v_lshl_add_u32 v6, v3, 4, v6
    s_mul_i32 s48, s34, 1152
    s_lshl_b32 s49, s23, 7
    s_add_u32 s48, s48, s49
    buffer_load_dwordx4 v[32:35], v6, s[44:47], s48 offen
    buffer_load_dwordx4 v[36:39], v6, s[44:47], s48 offen offset:64''')
    a(f'''v_lshrrev_b32 v7, 2, v2
    v_lshl_add_u32 v7, v3, 2, v7
    v_mul_u32_u24 v8, 1152, v7
    v_and_b32 v9, 3, v2
    v_lshl_add_u32 v8, v9, 3, v8
    v_bfe_u32 v7, v7, 1, 2
    v_lshlrev_b32 v7, 5, v7
    s_lshl_b32 s50, s23, 6''')
    for z,(off) in enumerate([0,32,18*32,19*32]):
        a(f's_add_u32 s51, s50, {off}\nv_xor_b32 v{10+z}, s51, v7\nv_add_u32 v{10+z}, v{10+z}, v8')
    if TRACE: a.tp(1)
    a('s_waitcnt vmcnt(2)')
    if TRACE: a.tp(2)
    for r in range(4):
        a(f'v_xor_b32 v{24+r}, s30, v{20+r}\nv_and_b32 v{24+r}, s28, v{24+r}\nv_xor_b32 v{28+r}, s29, v{16+r}\nv_and_b32 v{28+r}, s28, v{28+r}')
    a('s_barrier')
    if TRACE: a.tp(3)
    for z in [0,2,1,3]:
        for blk in range(2):
            d=40+(z*2+blk)*4
            a(f'ds_read_b64_tr_b16 v[{d}:{d+1}], v{10+z} offset:{blk*36864}\nds_read_b64_tr_b16 v[{d+2}:{d+3}], v{10+z} offset:{blk*36864+18432}')
    a(f'''v_mul_u32_u24 v14, {YR}, v2
    v_add_u32 v14, {YS}, v14
    s_lshl_b32 s51, s23, 7
    v_lshl_add_u32 v7, v3, 4, s51
    v_add_u32 v8, v14, v7
    v_sub_u32 v9, v14, v7
    v_add_u32 v9, {(576-19)*4}, v9''')
    P=72; Q=80; PN=88
    for dc in range(2):
        a(f's_waitcnt lgkmcnt({12-8*dc})')
        a(f'{MM} {vr(P+4*dc)}, {vr(40+dc*8)}, v[16:19], 0')
        a(f'{MM} {vr(P+4*dc)}, {vr(44+dc*8)}, v[24:27], {vr(P+4*dc)}')
        a(f's_waitcnt lgkmcnt({8-8*dc})')
        a(f'{MM} {vr(Q+4*dc)}, {vr(56+dc*8)}, v[20:23], 0')
        a(f'{MM} {vr(Q+4*dc)}, {vr(60+dc*8)}, v[28:31], {vr(Q+4*dc)}')
    Ln=a.label('Lnyq')
    if TRACE: a.tp(4)
    a(f'''s_cmp_lg_u32 s23, 0
    s_cbranch_scc1 {Ln}
    {MM} {vr(PN)}, v[56:59], v[16:19], 0
    {MM} {vr(PN)}, v[60:63], v[24:27], {vr(PN)}
    s_nop 7
    s_mov_b64 exec, 0xffff
    v_mov_b32 v{Q}, 0
    ds_write_b32 v14, v{PN} offset:{288*4}
    s_mov_b64 exec, -1
    {Ln}:
    s_nop 7''')
    for dc in range(2):
        for i in range(4): a(f'v_sub_f32 v{40+4*dc+i}, v{P+4*dc+i}, v{Q+4*dc+i}')
        a(f'ds_write_b128 v8, {vr(40+4*dc)} offset:{64*dc}')
        for i in range(4):
            a(f'v_add_f32 v{48+4*dc+i}, v{P+4*dc+i}, v{Q+4*dc+i}\nds_write_b32 v9, v{48+4*dc+i} offset:{(19-16*dc-i)*4}')
    a(f'''s_lshl_b32 s51, s23, 8
    v_lshl_add_u32 v7, v3, 5, s51
    v_add_u32 v8, v14, v7
    s_waitcnt lgkmcnt(0)
    s_barrier''')
    if TRACE: a.tp(5)
    for ii in range(2):
        a(f'ds_read_b128 {vr(40+8*ii)}, v8 offset:{128*ii}\nds_read_b128 {vr(44+8*ii)}, v8 offset:{128*ii+16}')
    a.srd(16,14,H_SZ,H_OFF); a.srd(36,14,HNF_SZ,HNF_OFF)
    a('s_mov_b32 s52, 0xffff0000\nv_mov_b32 v10, 0\nv_mov_b32 v11, 0\ns_waitcnt vmcnt(0) lgkmcnt(0)')
    for r in range(8):
        a(f'''v_lshlrev_b32 v12, 16, v{32+r}
        v_and_b32 v13, s52, v{32+r}
        v_add_f32 v12, v12, v{40+2*r}
        v_add_f32 v13, v13, v{41+2*r}
        v_cvt_pk_bf16_f32 v{32+r}, v12, v13
        v_lshlrev_b32 v{40+2*r}, 16, v{32+r}
        v_and_b32 v{41+2*r}, s52, v{32+r}
        v_add_f32 v10, v10, v{40+2*r}
        v_fmac_f32 v11, v{40+2*r}, v{40+2*r}
        v_add_f32 v10, v10, v{41+2*r}
        v_fmac_f32 v11, v{41+2*r}, v{41+2*r}''')
    a(f'''buffer_store_dwordx4 v[32:35], v6, s[16:19], s48 offen
    buffer_store_dwordx4 v[36:39], v6, s[16:19], s48 offen offset:64''')
    if TRACE: a.tp(6)
    red_q(a,10,12); red_q(a,11,12)
    a(f'''v_lshlrev_b32 v12, 3, v2
    v_add_u32 v12, {PS}, v12
    s_lshl_b32 s51, s23, 7
    v_add_u32 v13, s51, v12
    ds_write_b64 v13, v[10:11]
    s_waitcnt lgkmcnt(0)
    s_barrier''')
    if TRACE: a.tp(7)
    for w in range(9): a(f'ds_read_b64 v[{56+2*w}:{57+2*w}], v12 offset:{128*w}')
    a(f'''s_lshl_b32 s51, s24, 1
    s_add_u32 s51, s51, s25
    s_mul_i32 s51, s51, 18432
    s_lshl_b32 s53, s23, 11
    s_add_u32 s51, s51, s53
    s_waitcnt lgkmcnt(0)''')
    for w in range(1,9): a(f'v_add_f32 v56, v56, v{56+2*w}\nv_add_f32 v57, v57, v{57+2*w}')
    ln_scale(a,56,57,12)
    a('v_cvt_pk_bf16_f32 v56, v56, v56\nv_lshlrev_b32 v56, 16, v56')
    for r in range(8):
        a(f'''v_sub_f32 v12, v{40+2*r}, v56
        v_sub_f32 v13, v{41+2*r}, v56
        v_cvt_pk_bf16_f32 v12, v12, v13
        v_and_b32 v13, s52, v12
        v_lshlrev_b32 v12, 16, v12
        v_mul_f32 v12, v12, v57
        v_mul_f32 v13, v13, v57
        v_cvt_pk_bf16_f32 v{60+r}, v12, v13''')
    a(f'''buffer_store_dwordx4 v[60:63], v4, s[36:39], s51 offen
    buffer_store_dwordx4 v[64:67], v4, s[36:39], s51 offen offset:1024''')
    if TRACE:
        a.tp(8); a('s_waitcnt vmcnt(0)'); a.tp(9); a.trace_end(kidx,10,tmp=72)
    a(f'Ldone_{name}:')
    if STAMPS: a.stamp_end(kidx,tmp=16)
    a(f'Lend_{name}:\ns_endpgm')
    a.end(name,(NWG,1,1),NW*64,PS+9*128,96)
    return NWG

def k_gemm1(a, kidx):
    name='gemm1_kernel'
    HB=16; ACC=[160,176]; AR=192; T=216
    a.begin(name)
    a(f's_cmp_ge_u32 s2, 256\ns_cbranch_scc1 Lend_{name}')
    if STAMPS: a.stamp_start()
    a(f'''s_load_dwordx2 s[4:5], s[0:1], {KA_WS}
    v_lshrrev_b32 v2, 6, v0
    v_and_b32 v1, 63, v0
    v_lshlrev_b32 v3, 4, v1
    v_readfirstlane_b32 s6, v2
    s_and_b32 s7, s2, 7
    s_lshr_b32 s20, s2, 3
    s_and_b32 s21, s7, 1
    s_lshl_b32 s21, s21, 2
    s_and_b32 s22, s20, 3
    s_add_u32 s21, s21, s22
    s_lshr_b32 s22, s7, 1
    s_lshl_b32 s22, s22, 3
    s_lshr_b32 s23, s20, 2
    s_add_u32 s22, s22, s23
    s_lshl_b32 s21, s21, 3
    s_add_u32 s21, s21, s6
    s_mul_i32 s23, s22, {9*36864}
    s_mul_i32 s24, s21, 36864
    s_mul_i32 s25, s6, 4608
    s_waitcnt lgkmcnt(0)''')
    a(f'''s_add_u32 s8, s4, s23
    s_addc_u32 s9, s5, 0
    s_mov_b32 s10, {9*36864}
    s_mov_b32 s11, 0x20000''')
    a.srd(12,4,HNF_SZ,HNF_OFF); a.srd(16,4,GF_SZ,GF_OFF)
    a(f'''v_add_u32 v4, s25, v3
    v_add_u32 v10, 18432, v3
    s_mov_b32 s26, s25''')
    def dma():
        return ['s_mov_b32 m0, s26\ns_mov_b32 exec_hi, 0\nbuffer_load_dwordx4 v4, s[8:11], 0 offen lds\ns_mov_b32 exec_hi, -1']+\
               [f'buffer_load_dwordx4 v4, s[8:11], 0 offen offset:{512+1024*p} lds' for p in range(4)]+\
               [f'v_add_u32 v4, {36864}, v4\ns_add_u32 s26, s26, 36864\ns_cmp_ge_u32 s26, {4*36864}\ns_cselect_b32 s26, s25, s26']
    def HR(ks,m): return HB+8*ks+4*m
    def hload(ks,m):
        pre=f's_add_u32 s27, s24, {(ks>>2)*4096}\n' if m==0 else ''
        return pre+f'buffer_load_dwordx4 {vr(HR(ks,m))}, v{3 if m==0 else 10}, s[12:15], s27 offen offset:{(ks&3)*1024}'
    for x in dma(): a(x)
    for ks in range(9):
        for m in range(2): a(hload(ks,m))
    for x in dma(): a(x)
    for ks in range(9,18):
        for m in range(2): a(hload(ks,m))
    for x in dma(): a(x)
    for x in dma(): a(x)
    a(f'''v_bfe_u32 v5, v1, 4, 1
    v_mul_u32_u24 v5, {144*1024}, v5
    v_and_b32 v6, 15, v1
    v_lshrrev_b32 v7, 5, v1
    v_lshl_add_u32 v6, v7, 4, v6
    v_lshl_add_u32 v5, v6, 4, v5
    s_mul_i32 s28, s21, {2*144*1024}
    s_mul_i32 s29, s22, {9*512}
    s_add_u32 s28, s28, s29
    s_mov_b32 s30, 0xbfb8aa3b
    v_mov_b32 v8, v3
    v_add_u32 v9, 36864, v3
    s_mov_b32 s31, 36864''')
    def epilogue(acc):
        ops=[]
        for j in range(8): ops.append(f'v_mul_f32 v{T+j}, s30, v{acc+j}')
        for j in range(8): ops.append(f'v_exp_f32 v{T+j}, v{T+j}')
        for j in range(8): ops.append(f'v_mul_f32 v{T+8+j}, v{acc+j}, v{acc+8+j}')
        for j in range(8): ops.append(f'v_add_f32 v{T+j}, 1.0, v{T+j}')
        for j in range(8): ops.append(f'v_rcp_f32 v{T+j}, v{T+j}')
        for j in range(8): ops.append(f'v_mul_f32 v{T+8+j}, v{T+8+j}, v{T+j}')
        for j in range(4): ops.append(f'v_cvt_pk_bf16_f32 v{T+16+j}, v{T+8+2*j}, v{T+9+2*j}')
        ops.append('s_nop 1')
        ops.append(f'v_permlane16_swap_b32 v{T+16}, v{T+18}')
        ops.append(f'v_permlane16_swap_b32 v{T+17}, v{T+19}')
        ops.append(f'buffer_store_dwordx4 {vr(T+16)}, v5, s[16:19], s28 offen\ns_add_u32 s28, s28, 512')
        return ops
    def body(acc, prev, first=False):
        fill={k:[] for k in range(72)}
        if not first:
            fill[0].append('s_waitcnt vmcnt(5)\ns_barrier')
            d=dma() if 'nodma' not in X else []
            for i,x in enumerate(d): fill[2+2*i].append(x)
            ep=epilogue(prev) if 'noep' not in X else ['s_nop 0']
            n=len(ep); s0=8; ns=62
            for i,x in enumerate(ep): fill[s0+i*ns//n].append(x)
        else:
            fill[54].append('s_barrier')
        n=0
        for grp in range(12):
            kg=grp>>1; mat=grp&1
            for m in range(2):
                for i in range(3):
                    ks=3*kg+i; fr=3*grp+i; reg=AR+4*(fr%6)
                    w=[]
                    if first and mat==0:
                        after=(17-ks)*2+(1-m)+10+(5 if ks<9 else 0)
                        w.append(f'vmcnt({after})')
                    if m==0: w.append(f'lgkmcnt({5-i})')
                    if w: a('s_waitcnt '+' '.join(w))
                    d=acc+8*mat+4*m
                    c='0' if ks==0 else vr(d)
                    a(f'{MM} {vr(d)}, {vr(reg)}, {vr(HR(ks,m))}, {c}')
                    if m==1 and 'nolds' not in X:
                        fn=fr+6
                        if fn<36: a(f'ds_read_b128 {vr(reg)}, v8 offset:{fn*1024}')
                        else:     a(f'ds_read_b128 {vr(reg)}, v9 offset:{(fn-36)*1024}')
                    for x in fill[n]: a(x)
                    n+=1
        a(f'''v_mov_b32 v8, v9
        s_add_u32 s31, s31, 36864
        s_cmp_ge_u32 s31, {4*36864}
        s_cselect_b32 s31, 0, s31
        v_add_u32 v9, s31, v3''')
    if TRACE: a.tp(0)
    a('s_waitcnt vmcnt(51)\ns_barrier')
    if TRACE: a.tp(1)
    for k in range(6): a(f'ds_read_b128 {vr(AR+4*k)}, v8 offset:{k*1024}')
    body(ACC[0],None,first=True)
    if TRACE:
        for it in range(4):
            a.tp(2+2*it); body(ACC[1],ACC[0]); a.tp(3+2*it); body(ACC[0],ACC[1])
        a.tp(10)
    else:
        a('s_mov_b32 s32, 0')
        a(f'Lloop_{name}:')
        body(ACC[1],ACC[0]); body(ACC[0],ACC[1])
        a(f's_add_u32 s32, s32, 1\ns_cmp_lt_u32 s32, 4\ns_cbranch_scc1 Lloop_{name}')
    a('s_nop 7')
    for x in epilogue(ACC[0]): a(x)
    if TRACE:
        a.tp(11); a('s_waitcnt vmcnt(0)'); a.tp(12); a.trace_end(kidx,13,tmp=16)
    if STAMPS: a.stamp_end(kidx,tmp=16)
    a(f'Lend_{name}:\ns_endpgm')
    a.end(name,(256,1,1),512,4*36864,240)
    return 256

import gen as G1
G1.STAMPS=STAMPS; G1.TRACE=TRACE
if __name__=='__main__':
    a=Asm(); ns=[]
    SPLIT=int(os.environ.get('SPLIT','1944'))
    ns.append(k_fnet1(a,0,0,SPLIT)); ns.append(k_fnet2(a,1,SPLIT,NUNITS)); ns.append(k_gemm1(a,2)); ns.append(G1.k_gemm2(a,3)); ns.append(G1.k_reduce(a,4))
    hdr=open(os.path.join(os.path.dirname(os.path.abspath(__file__)),'header.txt')).read()
    open(sys.argv[1],'w').write(a.text(hdr))
    print(','.join(map(str,ns)))
```

```python
import sys, os
os.environ['STAMPS']='0'
import gen2 as G
from asmlib import *
mode=sys.argv[1]
a=Asm()
def extra(name):
    a.begin(name)
    a(f's_cmp_ge_u32 s2, 256\ns_cbranch_scc1 Lend_{name}')
    if mode in('read','copy'):
        a('s_load_dwordx4 s[4:7], s[0:1], 8\ns_load_dwordx2 s[20:21], s[0:1], 88\nv_lshlrev_b32 v1, 4, v0\ns_lshl_b32 s16, s2, 15\ns_waitcnt lgkmcnt(0)')
        a.srd(8,4,8<<20); a.srd(12,6,8<<20); a.srd(24,20,16<<20,0x8000000)
        for i in range(4):
            a(f's_add_u32 s17, s16, {i*8192}\nbuffer_load_dwordx4 v[{4+8*i}:{7+8*i}], v1, s[8:11], s17 offen\nbuffer_load_dwordx4 v[{8+8*i}:{11+8*i}], v1, s[12:15], s17 offen')
        a('s_waitcnt vmcnt(0)')
        if mode=='copy':
            a('s_lshl_b32 s16, s2, 16')
            for i in range(8):
                a(f's_add_u32 s17, s16, {i*8192}\nbuffer_store_dwordx4 v[{4+4*i}:{7+4*i}], v1, s[24:27], s17 offen')
    if mode=='write':
        a('s_load_dwordx2 s[20:21], s[0:1], 88\nv_lshlrev_b32 v1, 4, v0\ns_lshl_b32 s16, s2, 16\nv_mov_b32 v4, 0\nv_mov_b32 v5, 0\nv_mov_b32 v6, 0\nv_mov_b32 v7, 0\ns_waitcnt lgkmcnt(0)')
        a.srd(24,20,16<<20,0x8000000)
        for i in range(8):
            a(f's_add_u32 s17, s16, {i*8192}\nbuffer_store_dwordx4 v[4:7], v1, s[24:27], s17 offen')
    a(f'Lend_{name}:\ns_endpgm')
    a.end(name,(256,1,1),512,0,64)
if mode!='base': extra('extra_kernel')
if mode=='empty4':
    for i in range(3): a.relaunch('extra_kernel',(256,1,1),512,0)
G.k_fnet1(a,0,0,1944); G.k_fnet2(a,1,1944,G.NUNITS); G.k_gemm1(a,2); G.G1.k_gemm2(a,3); G.G1.k_reduce(a,4)
open(sys.argv[2],'w').write(a.text(open('header.txt').read()))
```

```python
import os
RT=os.environ.get('RT','0')=='1'
NAME='sequential_preLN__spectral_fnet__swiglu_ffn__prompt'
STAMP_OFF=240<<20
class Asm:
    def __init__(self):
        self.lines=[]; self.launch=[]; self.descs=[]; self.nlabel=0
    def __call__(self, s):
        for l in s.split('\n'):
            self.lines.append('    '+l.strip() if l.strip() and not l.strip().endswith(':') else l.strip())
    def label(self, base='L'):
        self.nlabel+=1; return f'{base}_{self.nlabel}'
    def begin(self, name):
        self.lines+= ['.text', f'.globl {name}', '.p2align 8', f'.type {name},@function', f'{name}:']
    def end(self, name, grid, block, lds, vgpr, sgpr=100, accum=None, wgy=False):
        if accum is None: accum=(vgpr+3)//4*4
        accum=min(accum,256)
        self.launch.append(f'; @launch kernel={name} grid=({grid[0]},{grid[1]},{grid[2]}) block=({block},1,1) lds={lds}')
        d=['.section .rodata,"a"','.p2align 6',f'.amdhsa_kernel {name}',
           f'  .amdhsa_next_free_vgpr {vgpr}',f'  .amdhsa_next_free_sgpr {sgpr}',f'  .amdhsa_accum_offset {accum}',
           '  .amdhsa_group_segment_fixed_size 0','  .amdhsa_kernarg_size 96','  .amdhsa_user_sgpr_count 2',
           '  .amdhsa_user_sgpr_kernarg_segment_ptr 1','  .amdhsa_system_sgpr_workgroup_id_x 1']
        if wgy: d.append('  .amdhsa_system_sgpr_workgroup_id_y 1')
        d+=['  .amdhsa_float_denorm_mode_32 3','  .amdhsa_float_denorm_mode_16_64 3','.end_amdhsa_kernel']
        self.descs+=d
    def relaunch(self, name, grid, block, lds):
        self.launch.append(f'; @launch kernel={name} grid=({grid[0]},{grid[1]},{grid[2]}) block=({block},1,1) lds={lds}')
    def srd(self, d, base, nbytes, off=0):
        if off:
            self(f's_add_u32 s{d}, s{base}, {off:#x}\ns_addc_u32 s{d+1}, s{base+1}, 0')
        else:
            self(f's_mov_b32 s{d}, s{base}\ns_mov_b32 s{d+1}, s{base+1}')
        self(f's_mov_b32 s{d+2}, {nbytes:#x}\ns_mov_b32 s{d+3}, 0x20000')
    def stamp_start(self):
        self('s_memrealtime s[90:91]\ns_memtime s[92:93]')
    def stamp_end(self, kidx, wgreg='s2', tid='v0', tmp=0):
        L=self.label('Lst')
        t=tmp
        self(f'''s_waitcnt vmcnt(0) lgkmcnt(0)
        s_barrier
        s_memrealtime s[94:95]
        s_memtime s[96:97]
        s_load_dwordx2 s[84:85], s[0:1], 88
        s_waitcnt lgkmcnt(0)
        s_add_u32 s80, s84, {STAMP_OFF+kidx*65536*4:#x}
        s_addc_u32 s81, s85, 0
        s_mov_b32 s82, 0x40000
        s_mov_b32 s83, 0x20000
        s_lshl_b32 s86, {wgreg}, 5
        v_cmp_eq_u32 vcc, 0, {tid}
        s_and_saveexec_b64 s[88:89], vcc
        s_cbranch_execz {L}
        v_mov_b32 v{t+8}, s86
        v_mov_b32 v{t}, s90
        v_mov_b32 v{t+1}, s91
        v_mov_b32 v{t+2}, s92
        v_mov_b32 v{t+3}, s93
        v_mov_b32 v{t+4}, s94
        v_mov_b32 v{t+5}, s95
        v_mov_b32 v{t+6}, s96
        v_mov_b32 v{t+7}, s97
        buffer_store_dwordx4 v[{t}:{t+3}], v{t+8}, s[80:83], 0 offen
        buffer_store_dwordx4 v[{t+4}:{t+7}], v{t+8}, s[80:83], 0 offen offset:16
        {L}:
        s_mov_b64 exec, s[88:89]''')
    def tp(self, i):
        self(f's_mem{"realtime" if RT else "time"} s[{54+2*i}:{55+2*i}]')
    def trace_end(self, kidx, n, wgreg='s2', tid='v0', tmp=0):
        t=tmp
        self(f'''s_waitcnt vmcnt(0) lgkmcnt(0)
        s_load_dwordx2 s[84:85], s[0:1], 88
        v_mov_b32 v{t}, 0
        s_waitcnt lgkmcnt(0)
        s_add_u32 s80, s84, {STAMP_OFF+(4<<20)+kidx*(1<<20):#x}
        s_addc_u32 s81, s85, 0
        s_mov_b32 s82, 0x100000
        s_mov_b32 s83, 0x20000''')
        for i in range(n):
            self(f's_sub_u32 s86, s{54+2*i}, {"0" if RT else "s92"}\ns_nop 0\nv_writelane_b32 v{t}, s86, {i}')
        self(f'''v_lshrrev_b32 v{t+1}, 6, {tid}
        v_lshlrev_b32 v{t+1}, 6, v{t+1}
        v_and_b32 v{t+2}, 63, {tid}
        v_lshl_add_u32 v{t+1}, v{t+2}, 2, v{t+1}
        s_lshl_b32 s86, {wgreg}, 10
        s_mov_b64 exec, 0xffff
        buffer_store_dword v{t}, v{t+1}, s[80:83], s86 offen
        s_mov_b64 exec, -1''')
    def text(self, header=''):
        return header+'\n'.join(self.launch)+'\n.amdgcn_target "amdgcn-amd-amdhsa--gfx950"\n'+'\n'.join(self.lines)+'\n'+'\n'.join(self.descs)+'\n'
```

```python
import sys, os
sys.path.insert(0, os.path.dirname(os.path.abspath(__file__)))
from asmlib import *

STAMPS = os.environ.get('STAMPS','0')=='1'
TRACE = os.environ.get('TRACE','')
X = set(os.environ.get('X','').split(','))
def ENV(k,d): return int(os.environ.get(k,str(d)))
EP_OFF=0
F1_OFF=0x01000; F2_OFF=0x09000; FB_OFF=0x0F000; FG_OFF=0x11000; FR_OFF=0x20000; FL_SZ=0x40000
W2F_OFF=0x0C00000; W2F_SZ=16*9*36864
RAB_OFF=0x1200000; RAB_SZ=64*32*1152
HNF_OFF=0x1600000; HNF_SZ=128*18432
HF_OFF =0x1A00000; HF_SZ=128*18432
GF_OFF =0x2000000; GF_SZ=128*144*1024
PART_OFF=0x4000000; PART_SZ=256*4*7168
XSZ=2048*1152
KA_X=0; KA_CS=8; KA_SS=16; KA_CD=24; KA_SD=32; KA_WG=48; KA_WU=56; KA_WD=64; KA_OUT=72; KA_DBG=80; KA_WS=88
MM='v_mfma_f32_16x16x32_bf16'
SPIN=200000
def vr(b,n=4): return f'v[{b}:{b+n-1}]'
def ar(b,n=4): return f'a[{b}:{b+n-1}]'
def sr(b,n=4): return f's[{b}:{b+n-1}]'

def tp(a, setname, i):
    if TRACE==setname: a.tp(i)
def poll(a, vaddr, soff, vtmp, need=None, sleep=2):
    L=a.label('Lpoll'); D=a.label('Lpd')
    a(f's_mov_b32 s9, 0\n{L}:\nbuffer_load_dword v{vtmp}, v{vaddr}, s[12:15], {soff} offen sc1\ns_waitcnt vmcnt(0)')
    flagcmp(a, vtmp, need)
    a(f'''s_cbranch_vccz {D}
    s_add_u32 s9, s9, 1
    s_cmp_gt_u32 s9, {SPIN}
    s_cbranch_scc1 {D}
    s_sleep {sleep}
    s_branch {L}
    {D}:''')
def flagcmp(a, v, need):
    if need is None: a(f'v_cmp_ne_u32 vcc, s6, v{v}\ns_nop 1')
    else: a(f'v_subrev_u32 v{v}, s6, v{v}\nv_subrev_u32 v{v}, {need}, v{v}\nv_cmp_lt_u32 vcc, {9-need}, v{v}\ns_nop 1')
def setflag(a, soff, vt, add=0):
    a(f'v_mov_b32 v{vt}, 0\nv_mov_b32 v{vt+1}, s6')
    if add: a(f'v_add_u32 v{vt+1}, {add}, v{vt+1}')
    a(f's_mov_b64 exec, 1\nbuffer_store_dword v{vt+1}, v{vt}, s[12:15], {soff} offen sc1\ns_mov_b64 exec, -1')
def red_q2(a, v, t):
    for op in ('v_permlane32_swap_b32','v_permlane16_swap_b32'):
        a(f'''v_mov_b32 v{t}, v{v}
        v_mov_b32 v{t+1}, v{v+1}
        s_nop 0
        {op} v{t}, v{v}
        {op} v{t+1}, v{v+1}
        s_nop 0
        v_pk_add_f32 v[{v}:{v+1}], v[{v}:{v+1}], v[{t}:{t+1}]''')
def ln_scale(a, pairs):
    steps=['v_mul_f32 v{m}, 0x3ae38e39, v{m}','v_mul_f32 v{q}, 0x3ae38e39, v{q}','v_fma_f32 v{q}, -v{m}, v{m}, v{q}','v_max_f32 v{q}, 0, v{q}',
           'v_cvt_pk_bf16_f32 v{q}, v{q}, v{q}','v_lshlrev_b32 v{q}, 16, v{q}','v_add_f32 v{q}, 0x3727c5ac, v{q}','v_cvt_pk_bf16_f32 v{q}, v{q}, v{q}',
           'v_lshlrev_b32 v{q}, 16, v{q}','v_sqrt_f32 v{q}, v{q}','NOP','v_cvt_pk_bf16_f32 v{q}, v{q}, v{q}','v_lshlrev_b32 v{q}, 16, v{q}','v_rcp_f32 v{q}, v{q}','NOP']
    for st in steps:
        if st=='NOP': a('s_nop 0')
        else:
            for m,q in pairs: a(st.format(m=m,q=q))

class VM:
    def __init__(s): s.ops=[]; s.marks={}
    def add(s,tag): s.ops.append(tag)
    def mark(s,tag): s.marks[tag]=len(s.ops)
    def since(s,tag): return min(63,len(s.ops)-s.marks[tag])
    def n_after(s,tag):
        idx=[i for i,o in enumerate(s.ops) if o==tag]
        assert idx, tag
        return min(63,len(s.ops)-1-idx[-1])

def prep_w2(a):
    a(f'''v_lshrrev_b32 v14, 3, v1
    v_and_b32 v15, 7, v1
    v_bfe_u32 v5, v14, 1, 1
    v_lshlrev_b32 v5, 2, v5
    v_xor_b32 v5, v5, v15
    v_lshlrev_b32 v5, 4, v5
    v_lshrrev_b32 v11, 2, v2
    v_lshl_add_u32 v11, v3, 3, v11
    v_lshlrev_b32 v11, 7, v11
    v_add_u32 v11, s11, v11
    v_and_b32 v8, 1, v3
    v_bfe_u32 v12, v2, 3, 1
    v_lshl_or_b32 v8, v12, 1, v8
    v_lshlrev_b32 v8, 5, v8
    v_and_b32 v9, 3, v2
    v_mul_u32_u24 v6, 1152, v14
    v_add_u32 v5, v5, v6
    v_xor_b32 v6, 32, v5''')
    a.srd(32,52,4608*1152); a.srd(40,4,W2F_SZ,W2F_OFF)
    for tk in range(2):
        B=16+4*tk
        a(f'''s_add_u32 s24, s22, {256*tk}
        s_cmp_lt_u32 s24, 432
        s_cselect_b32 s34, {4608*1152}, 0
        s_mul_i32 s44, s24, 21846
        s_lshr_b32 s44, s44, 16
        s_mul_i32 s45, s44, 3
        s_sub_u32 s45, s24, s45
        s_mul_i32 s{B}, s45, 3
        s_and_b32 s46, s44, 3
        s_lshr_b32 s44, s44, 2
        s_mul_i32 s47, s44, 57
        s_lshr_b32 s47, s47, 9
        s_mul_i32 s48, s47, 9
        s_sub_u32 s48, s44, s48
        s_lshl_b32 s49, s47, 1
        s_lshr_b32 s50, s46, 1
        s_add_u32 s49, s49, s50
        s_mul_i32 s49, s49, 576
        s_lshr_b32 s50, s48, 2
        s_lshl_b32 s50, s50, 8
        s_add_u32 s49, s49, s50
        s_and_b32 s50, s48, 3
        s_lshl_b32 s50, s50, 4
        s_add_u32 s49, s49, s50
        s_cmp_eq_u32 s48, 8
        s_cselect_b32 s51, 16, 64
        s_and_b32 s50, s46, 1
        s_mul_i32 s50, s50, s51
        s_lshl_b32 s50, s50, 1
        s_add_u32 s49, s49, s50
        s_mul_i32 s49, s49, 1152
        s_lshl_b32 s50, s{B}, 7
        s_add_u32 s49, s49, s50
        s_mul_i32 s51, s51, 1152
        s_add_u32 s25, s49, s51
        s_mul_i32 s50, s47, 36
        s_add_u32 s50, s50, s48
        s_mul_i32 s50, s50, 36864
        s_lshl_b32 s51, s46, 10
        s_add_u32 s{B+1}, s50, s51
        s_mov_b32 s{B+2}, s47''')
        for u in range(3):
            for p in range(4):
                a(f'''s_add_u32 m0, s11, {(3*tk+u)*4096+p*1024}
                s_add_u32 s50, s{49 if p<2 else 25}, {(p&1)*8*1152+u*128}
                buffer_load_dwordx4 v{5+(p&1)}, s[32:35], s50 offen lds''')
    Ls=a.label('Lw2s')
    for uu in range(6):
        tk,u=divmod(uu,3); B=16+4*tk
        if uu==3: a(f's_cmp_ge_u32 s24, 432\ns_cbranch_scc1 {Ls}')
        a(f's_add_u32 s53, s{B}, {u}\ns_waitcnt vmcnt(20)')
        for b in range(4):
            d=16+(uu*4+b)*4
            a(f'''s_cmp_eq_u32 s53, {2 if b<2 else 6}
            s_cselect_b32 s44, 8, 16
            s_cselect_b32 s46, {32*(b&1)}, {8*(b&1)}
            s_add_u32 s46, s46, {64*(b>>1)}
            v_mov_b32 v13, s46
            v_mad_u32_u24 v13, v9, s44, v13
            v_xor_b32 v13, v13, v8
            v_add_u32 v13, v13, v11
            ds_read_b64_tr_b16 v[{d}:{d+1}], v13 offset:{uu*4096}
            ds_read_b64_tr_b16 v[{d+2}:{d+3}], v13 offset:{uu*4096+512}''')
        for b in range(4):
            d=16+(uu*4+b)*4
            a(f'''s_lshl_b32 s44, s53, 2
            s_add_u32 s44, s44, {b}
            s_mul_i32 s46, s44, 57
            s_lshr_b32 s46, s46, 9
            s_mul_i32 s47, s46, 9
            s_sub_u32 s47, s44, s47
            s_and_b32 s48, s46, 1
            s_sub_u32 s47, s47, s48
            s_lshl_b32 s48, s{B+2}, 1
            s_sub_u32 s48, s47, s48
            s_sub_u32 s48, s48, 2
            s_and_b32 s48, s48, 7
            s_cmp_ge_u32 s48, 6
            s_addc_u32 s48, s48, 0
            s_cmp_ge_u32 s47, 8
            s_cselect_b32 s48, 6, s48
            s_mul_i32 s46, s46, {9*36864}
            s_lshl_b32 s48, s48, 12
            s_add_u32 s51, s{B+1}, s46
            s_add_u32 s51, s51, s48
            s_waitcnt lgkmcnt({6-2*b})
            buffer_store_dwordx4 {vr(d)}, v4, s[40:43], s51 offen sc1''')
    a(f'{Ls}:')

def phase1(a):
    BL=73728; RL=BL+3*24576; ST=RL+8192; OS=208
    ACC=32; ONE=72; RB=76; A2=108; NA=8; B2=140; NB=3; SV=164; PK=196
    Lst=a.label('Lstat'); Lj=a.label('Lp1j')
    a(f'''s_lshr_b32 s25, s8, 2
    s_sub_u32 s25, s8, s25
    s_and_b32 s24, s25, 3
    s_lshl_b32 s24, s24, 3
    s_add_u32 s24, s24, s7
    s_lshr_b32 s25, s25, 2
    s_mul_i32 s26, s25, 6
    s_lshl_b32 s27, s3, 1
    s_add_u32 s26, s26, s27
    v_lshrrev_b32 v5, 3, v1
    v_and_b32 v6, 7, v1
    v_xor_b32 v6, v6, v3
    v_lshlrev_b32 v6, 4, v6
    v_mul_u32_u24 v7, {32*1152}, v5
    v_add_u32 v7, v7, v6
    v_xor_b32 v8, 64, v7
    v_add_u32 v8, {8*32*1152}, v8
    s_mul_i32 s28, s3, 18432
    s_mul_i32 s29, s3, {16*32*1152}
    s_mul_i32 s30, s24, 1152
    s_add_u32 s29, s29, s30''')
    a.srd(16,36,XSZ)
    for cg in range(9):
        for rg in range(2):
            a(f's_add_u32 m0, s28, {rg*9216+cg*(1024-128)}\ns_nop 0\nbuffer_load_dwordx4 v{7+rg}, s[16:19], s29 offen offset:{cg*128} lds')
    a(f'''v_lshrrev_b32 v10, 1, v2
    v_xor_b32 v10, v10, v3
    v_lshlrev_b32 v10, 4, v10
    v_and_b32 v11, 7, v2
    v_lshl_add_u32 v10, v11, 7, v10
    v_lshrrev_b32 v9, 3, v2''')
    for r in range(4): a(f'v_mov_b32 v{ONE+r}, 0x3f803f80')
    a('s_mul_i32 s33, s3, 192')
    for i in range(3):
        a(f'''v_add_u32 v12, s33, v1
        v_add_u32 v12, {64*i}, v12
        v_mul_u32_u24 v13, 5462, v12
        v_lshrrev_b32 v13, 16, v13
        v_mul_u32_u24 v14, 12, v13
        v_sub_u32 v14, v12, v14
        v_lshlrev_b32 v14, 4, v14
        v_mul_u32_u24 v12, {OS}, v13
        v_add_u32 v{20+2*i}, v12, v14
        v_mul_u32_u24 v13, 36864, v13
        v_add_u32 v{21+2*i}, v13, v14''')
    a(f's_cmp_eq_u32 s3, 3\ns_cbranch_scc1 {Lst}')
    a(f'''s_cmp_lt_u32 s26, 18
    s_cselect_b32 s32, s42, s44
    s_cselect_b32 s33, s43, s45
    s_cselect_b32 s31, 0, 18
    s_sub_u32 s31, s26, s31
    s_mul_i32 s31, s31, {16*1152}
    s_add_u32 s32, s32, s31
    s_addc_u32 s33, s33, 0
    s_add_u32 s34, s42, {288*1152}
    s_addc_u32 s35, s43, 0
    s_cmp_eq_u32 s26, 18
    s_cselect_b32 s34, s34, s32
    s_cselect_b32 s35, s35, s33
    v_mul_u32_u24 v8, 1152, v5
    v_add_u32 v8, v8, v6
    v_mov_b32 v12, s32
    v_mov_b32 v13, s33
    v_mov_b32 v14, s34
    v_mov_b32 v15, s35
    v_cmp_eq_u32 vcc, 0, v5
    s_mul_i32 s31, s3, 24576
    s_add_u32 s31, s31, {BL}
    v_cndmask_b32 v12, v12, v14, vcc
    v_cndmask_b32 v13, v13, v15, vcc
    v_add_co_u32 v12, vcc, v12, v8
    v_xor_b32 v14, 64, v8
    v_add_u32 v14, {8*1152}, v14
    v_addc_co_u32 v13, vcc, 0, v13, vcc
    v_add_u32 v15, {16*1152}, v8
    v_add_u32 v16, {16*1152}, v14''')
    vm=VM()
    def bdma(cg):
        l=[]
        for rg in range(4):
            ad='v[12:13], off' if rg==0 else f'v{13+rg}, s[32:33]'
            l.append(f's_add_u32 m0, s31, {(cg%6)*4096+rg*1024-cg*128}\ns_nop 0\nglobal_load_lds_dwordx4 {ad} offset:{cg*128}')
        return l
    D=ENV('P1D',4)
    for cg in range(D):
        for x in bdma(cg): a(x); vm.add(cg)
    a(f'''v_lshl_add_u32 v17, v9, 10, v10
    v_add_u32 v17, s31, v17
    v_xor_b32 v18, 64, v17
    v_mul_u32_u24 v9, 9216, v9
    v_add_u32 v10, v10, v9
    v_xor_b32 v11, 64, v10
    v_lshrrev_b32 v5, 1, v2
    v_lshrrev_b32 v6, 1, v3
    v_xor_b32 v5, v5, v6
    v_lshlrev_b32 v5, 4, v5
    v_lshl_add_u32 v5, v2, 7, v5
    v_and_b32 v6, 1, v3
    v_lshl_add_u32 v5, v6, 3, v5
    v_add_u32 v26, {RL}, v5
    v_xor_b32 v27, 32, v26
    v_xor_b32 v28, 64, v26
    v_xor_b32 v29, 96, v26''')
    tp(a,'fn',0)
    a(f's_waitcnt vmcnt({4*D}) lgkmcnt(0)\ns_barrier')
    tp(a,'fn',1)
    seq=[]
    for ks in range(18): seq+=[('B',ks,0),('B',ks,1)]+[('A',ks,T) for T in range(4)]
    late=[]
    def rd(i):
        o=seq[i]; ks=o[1]
        if o[0]=='B':
            if o[2]==0 and (ks&1)==0: a(f's_waitcnt vmcnt({vm.n_after(ks>>1)})')
            a(f'ds_read_b128 {vr(B2+8*(ks%NB)+4*o[2])}, v{17+(ks&1)} offset:{((ks>>1)%6)*4096+o[2]*2048}')
        else:
            n=4*ks+o[2]
            a(f'ds_read_b128 {vr(A2+4*(n%NA))}, v{10+(ks&1)} offset:{o[2]*18432+(ks>>1)*1024}')
    issued=0
    for i in range(12): rd(i); issued+=1
    for i,o in enumerate(seq):
        if o[0]!='A': continue
        ks,T=o[1],o[2]; n=4*ks+T
        if T==0 and (ks&1)==0 and (ks>>1)+D<9: late+=[(x,(ks>>1)+D) for x in bdma((ks>>1)+D)]
        a(f's_waitcnt lgkmcnt({min(15,issued-1-i)})')
        for tt in range(2):
            d=ACC+16*tt+4*T; c='0' if ks==0 else vr(d)
            a(f'{MM} {vr(d)}, {vr(A2+4*(n%NA))}, {vr(B2+8*(ks%NB)+4*tt)}, {c}')
            if tt==0 and late:
                x,t=late.pop(0); a(x); vm.add(t)
        if T==3:
            for tt in range(2):
                d=ACC+32+4*tt; c='0' if ks==0 else vr(d)
                a(f'{MM} {vr(d)}, {vr(ONE)}, {vr(B2+8*(ks%NB)+4*tt)}, {c}')
        while issued<len(seq):
            nx=seq[issued]
            if nx[0]=='A' and 4*nx[1]+nx[2]-NA<=n: rd(issued); issued+=1
            elif nx[0]=='B' and (nx[1]-NB<ks or (nx[1]-NB==ks and T==3)): rd(issued); issued+=1
            else: break
    tp(a,'fn',2)
    a(f'''s_barrier
    v_lshlrev_b32 v12, 4, v3
    v_add_u32 v12, {ST}, v12''')
    for T in range(4):
        a(f'ds_read_b128 {vr(SV+8*T)}, v12 offset:{64*T}\nds_read_b128 {vr(SV+8*T+4)}, v12 offset:{256+64*T}')
    rr=[]
    for Tr in range(4):
        for j in range(2):
            for hh in range(2):
                d=RB+8*Tr+4*j+2*hh
                rr.append(f'ds_read_b64 v[{d}:{d+1}], v{26+2*j+hh} offset:{Tr*2048}')
    a(f'''v_mul_u32_u24 v13, {OS}, v2
    v_lshl_add_u32 v13, v3, 3, v13
    s_lshl_b32 s33, s3, 6
    v_add_u32 v13, s33, v13''')
    for T in range(4):
        a(f's_waitcnt lgkmcnt({6-2*T+4*T})')
        for x in rr[4*T:4*T+4]: a(x)
        for tt in range(2):
            d=ACC+16*tt+4*T; rs=ACC+32+4*tt
            for h in range(2):
                a(f'v_pk_fma_f32 v[{d+2*h}:{d+2*h+1}], v[{SV+8*T+4+2*h}:{SV+8*T+5+2*h}], v[{rs}:{rs+1}], v[{d+2*h}:{d+2*h+1}] neg_lo:[1,0,0] neg_hi:[1,0,0]')
            for h in range(2):
                a(f'v_pk_mul_f32 v[{d+2*h}:{d+2*h+1}], v[{d+2*h}:{d+2*h+1}], v[{SV+8*T+2*h}:{SV+8*T+2*h+1}]')
            for h in range(2):
                a(f'v_cvt_pk_bf16_f32 v{PK+8*tt+2*T+h}, v{d+2*h}, v{d+2*h+1}')
    a('s_waitcnt lgkmcnt(0)\ns_nop 0')
    for tt in range(2):
        for Tr in range(4):
            d=ACC+16*tt+4*Tr
            a(f'{MM} {vr(d)}, {vr(PK+8*tt)}, {vr(RB+8*Tr)}, 0')
            a(f'{MM} {vr(d)}, {vr(PK+8*tt+4)}, {vr(RB+8*Tr+4)}, {vr(d)}')
    for tt in range(2):
        for Tr in range(4):
            d=ACC+16*tt+4*Tr; o=SV+8*tt+2*Tr
            a(f'''v_cvt_pk_bf16_f32 v{o}, v{d}, v{d+1}
            v_cvt_pk_bf16_f32 v{o+1}, v{d+2}, v{d+3}
            ds_write_b64 v13, v[{o}:{o+1}] offset:{Tr*16*OS+32*tt}''')
    a(f's_branch {Lj}')
    a(f'''{Lst}:
    s_add_u32 s34, s38, {1024*4096}
    s_addc_u32 s35, s39, 0
    v_lshl_add_u32 v8, v5, 17, v6
    v_mov_b32 v12, s40
    v_mov_b32 v13, s41
    v_mov_b32 v14, s34
    v_mov_b32 v15, s35
    v_cmp_eq_u32 vcc, 0, v5
    v_mul_u32_u24 v9, 9216, v9
    v_add_u32 v10, v10, v9
    v_cndmask_b32 v12, v12, v14, vcc
    v_cndmask_b32 v13, v13, v15, vcc
    v_add_co_u32 v12, vcc, v12, v8
    v_xor_b32 v14, 64, v8
    v_add_u32 v14, {8<<17}, v14
    v_addc_co_u32 v13, vcc, 0, v13, vcc
    v_add_u32 v15, {16<<17}, v8
    v_add_u32 v16, {16<<17}, v14
    v_xor_b32 v11, 64, v10''')
    for z in range(8):
        ad=f'v{(8,14,15,16)[z&3]}, s[{38 if z<4 else 40}:{39 if z<4 else 41}]' if z!=4 else 'v[12:13], off'
        a(f's_mov_b32 m0, {RL+z*1024}\ns_nop 0\nglobal_load_lds_dwordx4 {ad}')
    a('s_waitcnt vmcnt(8) lgkmcnt(0)\ns_barrier')
    seq2=[(ks,T) for ks in range(18) for T in range(4)]
    def rd2(i):
        ks,T=seq2[i]; a(f'ds_read_b128 {vr(A2+4*(i%NA))}, v{10+(ks&1)} offset:{T*18432+(ks>>1)*1024}')
    for i in range(NA): rd2(i)
    for i,(ks,T) in enumerate(seq2):
        a(f's_waitcnt lgkmcnt({min(NA-1,71-i)})')
        f=vr(A2+4*(i%NA))
        c='0' if ks==0 else vr(ACC+8*T)
        a(f'{MM} {vr(ACC+8*T)}, {f}, {f}, {c}')
        c='0' if ks==0 else vr(ACC+8*T+4)
        a(f'{MM} {vr(ACC+8*T+4)}, {vr(ONE)}, {f}, {c}')
        if i+NA<72: rd2(i+NA)
    a(f'''v_and_b32 v12, 3, v2
    v_lshrrev_b32 v13, 2, v2
    v_lshlrev_b32 v14, 2, v2
    v_add_u32 v14, {ST}, v14
    v_cmp_eq_u32 s[34:35], v13, v3
    s_nop 3''')
    for r in range(1,4):
        a(f'v_cmp_eq_u32 vcc, {r}, v12\ns_nop 1')
        for T in range(4): a(f'v_cndmask_b32 v{ACC+8*T}, v{ACC+8*T}, v{ACC+8*T+r}, vcc')
    ln_scale(a,[(ACC+8*T+4,ACC+8*T) for T in range(4)])
    a('s_mov_b64 exec, s[34:35]')
    for T in range(4): a(f'ds_write_b32 v14, v{ACC+8*T} offset:{64*T}\nds_write_b32 v14, v{ACC+8*T+4} offset:{256+64*T}')
    a(f's_mov_b64 exec, -1\ns_waitcnt vmcnt(0) lgkmcnt(0)\ns_barrier\n{Lj}:')
    a.srd(20,4,RAB_SZ,RAB_OFF)
    a(f'''s_mul_i32 s33, s25, 192
    s_add_u32 s33, s33, s30
    s_add_u32 s6, s10, 16
    s_waitcnt lgkmcnt(0)
    s_barrier''')
    tp(a,'fn',3)
    for i in range(3): a(f'ds_read_b128 {vr(32+4*i)}, v{20+2*i}')
    for i in range(3): a(f's_waitcnt lgkmcnt({2-i})\nbuffer_store_dwordx4 {vr(32+4*i)}, v{21+2*i}, s[20:23], s33 offen sc1')
    tp(a,'fn',4)
    Lf=a.label('Lp1f')
    a(f's_mul_i32 s33, s24, 6\ns_add_u32 s33, s33, s25\ns_lshl_b32 s33, s33, 7\ns_add_u32 s33, s33, {F1_OFF}\ns_waitcnt vmcnt(0)\ns_barrier\ns_cmp_lg_u32 s3, 0\ns_cbranch_scc1 {Lf}')
    setflag(a,'s33',5)
    a(f'{Lf}:')
    tp(a,'fn',5)

def phase2(a, early_fill):
    YS=73728; YR=2320; PS=YS+16*YR; XR=112640; CO=131072
    a(f'''s_lshl_b32 s24, s7, 2
    s_lshr_b32 s25, s8, 3
    s_add_u32 s24, s24, s25
    s_bfe_u32 s26, s8, 0x10002
    s_and_b32 s25, s8, 1
    s_lshl_b32 s35, s24, 2
    s_lshl_b32 s27, s26, 1
    s_add_u32 s35, s35, s27
    s_add_u32 s35, s35, s25
    s_lshl_b32 s27, s26, 5
    s_cmp_eq_u32 s24, 0
    s_cselect_b32 s46, s27, s24
    s_cselect_b32 s28, 0, -1
    s_cselect_b32 s27, 0, 32
    s_cselect_b32 s26, 0, s26
    s_add_u32 s27, s27, s46
    s_sub_u32 s47, 64, s46
    s_cmp_eq_u32 s26, 1
    s_cselect_b32 s47, s47, s46
    s_cselect_b32 s29, 0x80008000, 0
    s_xor_b32 s30, s29, 0x80008000
    s_lshl_b32 s34, s25, 10
    s_add_u32 s34, s34, s47''')
    a.srd(16,36,XSZ)
    Lc=a.label('Lco'); Lx=a.label('Lcx')
    a(f'''v_lshrrev_b32 v5, 3, v1
    v_and_b32 v6, 7, v1
    v_xor_b32 v7, v6, v3
    v_lshlrev_b32 v7, 4, v7
    v_mul_u32_u24 v8, {64*1152}, v5
    v_add_u32 v7, v7, v8
    v_xor_b32 v8, 64, v7
    v_add_u32 v8, {8*64*1152}, v8
    s_mul_i32 s32, s34, 1152
    s_lshl_b32 s33, s3, 8
    s_add_u32 s31, s32, s33
    s_lshl_b32 s33, s3, 12''')
    for i in range(4):
        a(f's_add_u32 m0, s33, {XR+(i>>1)*(2048-128)+(i&1)*1024}\ns_nop 0\nbuffer_load_dwordx4 v{7+(i&1)}, s[16:19], s31 offen offset:{(i>>1)*128} lds')
    a(f'''s_cmp_ge_u32 s3, 2
    s_cbranch_scc1 {Lc}
    s_cmp_eq_u32 s3, 0
    s_cselect_b64 vcc, -1, 0
    s_lshl_b32 s33, s3, 10
    s_add_u32 m0, s33, {XR+8*2048-1024}
    v_cndmask_b32 v9, v8, v7, vcc
    buffer_load_dwordx4 v9, s[16:19], s32 offen offset:1024 lds
    s_branch {Lx}
    {Lc}:
    s_cmp_eq_u32 s3, 2
    s_cselect_b32 s20, s38, s40
    s_cselect_b32 s21, s39, s41
    s_mov_b32 s22, {2048*4096}
    s_mov_b32 s23, 0x20000
    v_lshrrev_b32 v9, 2, v1
    v_lshlrev_b32 v9, 18, v9
    v_and_b32 v10, 3, v1
    v_lshl_add_u32 v9, v10, 4, v9
    s_lshl_b32 s32, s34, 12
    s_lshl_b32 s33, s3, 10
    s_add_u32 m0, s33, {CO-2048}
    s_nop 0
    buffer_load_dwordx4 v9, s[20:23], s32 offen lds
    {Lx}:''')
    a.srd(16,4,RAB_SZ,RAB_OFF)
    a(f'''v_lshlrev_b32 v7, 1, v3
    v_xor_b32 v7, v7, v6
    v_lshlrev_b32 v7, 4, v7
    v_mul_u32_u24 v16, 1152, v5
    v_add_u32 v16, v16, v7
    s_mul_i32 s33, s3, 9216
    s_mul_i32 s31, s46, 36864
    s_mul_i32 s32, s27, 36864
    s_add_u32 s31, s31, s33
    s_add_u32 s32, s32, s33
    s_add_u32 s49, s33, 36864
    s_bitcmp1_b32 s8, 0
    s_cselect_b32 s48, s49, s33
    s_cselect_b32 s49, s33, s49
    s_cselect_b32 s50, s32, s31
    s_cselect_b32 s32, s31, s32
    s_mov_b32 s31, s50
    v_min_u32 v5, 47, v1
    v_lshlrev_b32 v5, 7, v5
    s_mul_i32 s52, s3, {48*128}
    s_add_u32 s52, s52, {F1_OFF}
    v_and_b32 v7, 1, v3
    v_lshrrev_b32 v8, 2, v2
    v_lshl_add_u32 v7, v7, 2, v8
    v_lshrrev_b32 v8, 1, v7
    v_lshlrev_b32 v8, 5, v8
    v_lshl_or_b32 v8, v7, 7, v8
    v_and_b32 v9, 3, v2
    v_lshl_or_b32 v8, v9, 3, v8
    v_lshrrev_b32 v9, 1, v3
    v_mul_u32_u24 v9, 9216, v9
    v_add_u32 v8, v8, v9
    s_lshl_b32 s24, s3, 5
    v_xor_b32 v22, s24, v8
    v_xor_b32 v23, 64, v22
    s_lshr_b32 s24, s3, 1
    s_lshl_b32 s24, s24, 10
    s_add_u32 s24, s24, 4096
    v_add_u32 v23, s24, v23
    v_mul_u32_u24 v14, {YR}, v2
    v_add_u32 v14, {YS}, v14
    s_lshl_b32 s24, s3, 6
    v_lshl_add_u32 v7, v3, 4, s24
    v_add_u32 v24, v14, v7
    v_sub_u32 v25, v14, v7
    v_add_u32 v25, {(576-259)*4}, v25
    v_lshlrev_b32 v10, 6, v2
    v_lshl_add_u32 v10, v3, 3, v10
    v_add_u32 v10, {CO}, v10
    s_lshl_b32 s24, s3, 7
    v_lshl_add_u32 v7, v3, 5, s24
    v_add_u32 v26, v14, v7
    v_lshrrev_b32 v27, 1, v2
    v_xor_b32 v27, v27, v3
    v_lshlrev_b32 v27, 4, v27
    v_and_b32 v11, 7, v2
    v_lshl_add_u32 v27, v11, 7, v27
    v_lshrrev_b32 v11, 3, v2
    v_lshl_add_u32 v27, v11, 10, v27
    s_and_b32 s24, s3, 1
    s_lshl_b32 s24, s24, 6
    v_xor_b32 v27, s24, v27
    s_lshr_b32 s24, s3, 1
    s_lshl_b32 s24, s24, 11
    s_add_u32 s24, s24, {XR}
    v_add_u32 v27, s24, v27''')
    tp(a,'fn',6)
    poll(a,5,'s52',6,sleep=1)
    tp(a,'fn',7)
    for blk in range(2):
        for cg in range(9):
            a(f's_add_u32 m0, s{48+blk}, {cg*(1024-128)+0}\ns_nop 0\nbuffer_load_dwordx4 v16, s[16:19], s{31+blk} offen offset:{cg*128} sc1 lds')
    a('s_waitcnt vmcnt(0)\ns_barrier')
    tp(a,'fn',8)
    WR=32; WI=36; WIS=40; WRS=44; FR=48; P=128; Q=148; PN=168; XG=172; U=48; V=68
    a(f'''ds_read_b64 v[{WR}:{WR+1}], v10
    ds_read_b64 v[{WR+2}:{WR+3}], v10 offset:32
    ds_read_b64 v[{WI}:{WI+1}], v10 offset:1024
    ds_read_b64 v[{WI+2}:{WI+3}], v10 offset:1056''')
    def frd(z,ab):
        for blk in range(2):
            d=FR+16*z+8*ab+4*blk
            a(f'ds_read_b64_tr_b16 v[{d}:{d+1}], v{22+ab} offset:{blk*36864+z*1024}\nds_read_b64_tr_b16 v[{d+2}:{d+3}], v{22+ab} offset:{blk*36864+18432+z*1024}')
    frd(0,0); frd(0,1)
    a('s_waitcnt lgkmcnt(8)')
    for r in range(4):
        a(f'v_xor_b32 v{WIS+r}, s30, v{WI+r}\nv_and_b32 v{WIS+r}, s28, v{WIS+r}\nv_xor_b32 v{WRS+r}, s29, v{WR+r}\nv_and_b32 v{WRS+r}, s28, v{WRS+r}')
    for z in range(5):
        if z<4: frd(z+1,0)
        a(f's_waitcnt lgkmcnt({8 if z<4 else 4})')
        a(f'{MM} {vr(P+4*z)}, {vr(FR+16*z)}, {vr(WR)}, 0')
        a(f'{MM} {vr(P+4*z)}, {vr(FR+16*z+4)}, {vr(WIS)}, {vr(P+4*z)}')
        if z<4: frd(z+1,1)
        a(f's_waitcnt lgkmcnt({8 if z<4 else 0})')
        a(f'{MM} {vr(Q+4*z)}, {vr(FR+16*z+8)}, {vr(WI)}, 0')
        a(f'{MM} {vr(Q+4*z)}, {vr(FR+16*z+12)}, {vr(WRS)}, {vr(Q+4*z)}')
        if z==0:
            a(f'{MM} {vr(PN)}, {vr(FR+8)}, {vr(WR)}, 0')
            a(f'{MM} {vr(PN)}, {vr(FR+12)}, {vr(WIS)}, {vr(PN)}')
    Ln=a.label('Lnyq'); L5=a.label('Ly5')
    a(f'''s_cmp_lg_u32 s3, 0
    s_cbranch_scc1 {Ln}
    s_mov_b64 exec, 0xffff
    v_mov_b32 v{Q}, 0
    ds_write_b32 v14, v{PN} offset:{288*4}
    s_mov_b64 exec, -1
    {Ln}:''')
    for z in range(5): a(f'ds_read_b128 {vr(XG+4*z)}, v27 offset:{z*4096}')
    for z in range(5):
        if z==4: a(f's_cmp_ge_u32 s3, 2\ns_cbranch_scc1 {L5}')
        for h in range(2):
            a(f'v_pk_add_f32 v[{U+4*z+2*h}:{U+4*z+2*h+1}], v[{P+4*z+2*h}:{P+4*z+2*h+1}], v[{Q+4*z+2*h}:{Q+4*z+2*h+1}] neg_lo:[0,1] neg_hi:[0,1]')
        a(f'ds_write_b128 v24, {vr(U+4*z)} offset:{256*z}')
        for h in range(2):
            a(f'v_pk_add_f32 v[{V+4*z+2*h}:{V+4*z+2*h+1}], v[{P+4*z+2*h}:{P+4*z+2*h+1}], v[{Q+4*z+2*h}:{Q+4*z+2*h+1}]')
        for i in range(4): a(f'ds_write_b32 v25, v{V+4*z+i} offset:{(259-64*z-i)*4}')
    a(f'{L5}:\ns_waitcnt lgkmcnt(0)\ns_barrier')
    tp(a,'fn',9)
    Y=48
    for z in range(5): a(f'ds_read_b128 {vr(Y+8*z)}, v26 offset:{512*z}\nds_read_b128 {vr(Y+8*z+4)}, v26 offset:{512*z+16}')
    a(f's_mul_i32 s101, s35, 18432\ns_lshl_b32 s24, s3, 10\ns_add_u32 s101, s101, s24\ns_lshl_b32 s53, s35, 7')
    early_fill()
    a.srd(32,4,HF_SZ,HF_OFF); a.srd(36,4,HNF_SZ,HNF_OFF)
    a('s_mov_b32 s52, 0xffff0000')
    L6=a.label('Ll5')
    for r in range(20):
        if r==16: a(f's_cmp_ge_u32 s3, 2\ns_cbranch_scc1 {L6}')
        y=f'v[{Y+2*r}:{Y+2*r+1}]'; t=92+2*(r&1)
        a(f'''v_lshlrev_b32 v{t}, 16, v{XG+r}
        v_and_b32 v{t+1}, s52, v{XG+r}
        v_pk_add_f32 {y}, {y}, v[{t}:{t+1}]
        v_cvt_pk_bf16_f32 v{XG+r}, v{Y+2*r}, v{Y+2*r+1}''')
        if r==0: a(f'v_pk_mul_f32 v[90:91], {y}, {y}')
        else: a(f'v_pk_fma_f32 v[90:91], {y}, {y}, v[90:91]')
        if r==1: a(f'v_pk_add_f32 v[88:89], v[{Y}:{Y+1}], {y}')
        elif r>1: a(f'v_pk_add_f32 v[88:89], v[88:89], {y}')
        if r%4==3: a(f's_add_u32 s51, s101, {(r//4)*4096}\nbuffer_store_dwordx4 {vr(XG+r-3)}, v4, s[32:35], s51 offen sc1')
    a(f'{L6}:\nv_add_f32 v96, v88, v89\nv_add_f32 v97, v90, v91')
    red_q2(a,96,98)
    a(f'''v_lshlrev_b32 v100, 3, v2
    v_add_u32 v100, {PS}, v100
    s_lshl_b32 s51, s3, 7
    v_add_u32 v101, s51, v100
    ds_write_b64 v101, v[96:97]
    s_waitcnt lgkmcnt(0)
    s_barrier''')
    tp(a,'fn',10)
    for w in range(4): a(f'ds_read_b64 v[{102+2*w}:{103+2*w}], v100 offset:{128*w}')
    a('s_waitcnt lgkmcnt(0)\nv_pk_add_f32 v[102:103], v[102:103], v[104:105]\nv_pk_add_f32 v[106:107], v[106:107], v[108:109]\nv_pk_add_f32 v[102:103], v[102:103], v[106:107]')
    ln_scale(a,[(102,103)])
    a('v_mul_f32 v104, v102, v103\nv_mov_b32 v102, v103\nv_sub_f32 v104, 0, v104\nv_mov_b32 v105, v104')
    L7=a.label('Ln5')
    for r in range(20):
        if r==16: a(f's_cmp_ge_u32 s3, 2\ns_cbranch_scc1 {L7}')
        y=f'v[{Y+2*r}:{Y+2*r+1}]'
        a(f'v_pk_fma_f32 {y}, {y}, v[102:103], v[104:105]\nv_cvt_pk_bf16_f32 v{108+r}, v{Y+2*r}, v{Y+2*r+1}')
        if r%4==3: a(f's_add_u32 s51, s101, {(r//4)*4096}\nbuffer_store_dwordx4 {vr(108+r-3)}, v4, s[36:39], s51 offen sc1')
    a(f'{L7}:')
    tp(a,'fn',11)
    Lf=a.label('Lp2f')
    a(f's_add_u32 s53, s53, {F2_OFF}\ns_waitcnt vmcnt(0)\ns_barrier\ns_cmp_lg_u32 s3, 0\ns_cbranch_scc1 {Lf}')
    setflag(a,'s53',100)
    a(f'{Lf}:')

KT=80 if not (STAMPS or TRACE) else 80
def ffn_setup(a):
    a(f"""s_load_dwordx4 s[28:31], s[0:1], {KA_WG}
    s_and_b32 s24, s7, 1
    s_lshl_b32 s24, s24, 2
    s_and_b32 s25, s8, 3
    s_add_u32 s24, s24, s25
    s_lshr_b32 s25, s8, 2
    s_lshr_b32 s26, s7, 1
    s_lshl_b32 s27, s26, 3
    s_add_u32 s27, s27, s25
    s_lshr_b32 s45, s3, 1
    s_and_b32 s46, s3, 1
    s_lshr_b32 s47, s27, 2
    s_mul_i32 s47, s47, 1152
    s_and_b32 s48, s27, 3
    s_lshl_b32 s49, s48, 7
    s_add_u32 s98, s47, s49
    s_mul_i32 s49, s46, {48*9216}
    s_add_u32 s98, s98, s49
    s_lshl_b32 s49, s48, 5
    s_add_u32 s99, s47, s49
    s_add_u32 s99, s99, 1024
    s_mul_i32 s11, s3, 6144
    s_cmp_ge_u32 s25, 6
    s_cselect_b32 s49, 6, 0
    s_sub_u32 s{KT}, s25, s49""")
    if 'norot' in X: a(f's_mov_b32 s{KT}, 0')
    for kg in range(1,6):
        a(f's_add_u32 s{KT+kg}, s{KT+kg-1}, 1\ns_cmp_eq_u32 s{KT+kg}, 6\ns_cselect_b32 s{KT+kg}, 0, s{KT+kg}')
    a(f"""v_lshrrev_b32 v9, 3, v1
    v_and_b32 v8, 7, v1
    v_bfe_u32 v5, v9, 1, 1
    v_lshlrev_b32 v5, 2, v5
    v_xor_b32 v5, v5, v8
    v_lshlrev_b32 v5, 4, v5
    v_mul_u32_u24 v9, 9216, v9
    v_add_u32 v5, v5, v9
    v_xor_b32 v6, 32, v5
    v_add_u32 v6, {8*9216-1024}, v6
    v_add_u32 v7, {2*(8*9216-1024)}, v5
    v_add_u32 v8, {2*(8*9216-1024)}, v6
    s_waitcnt lgkmcnt(0)
    s_cmp_eq_u32 s45, 0
    s_cselect_b32 s16, s28, s30
    s_cselect_b32 s17, s29, s31
    s_mov_b32 s18, {576*9216}
    s_mov_b32 s19, 0x20000""")
def cell_dma(line, kg):
    l=[('s',f's_mul_i32 s49, s{KT+kg}, {96*9216}'),('s','s_add_u32 s49, s49, s98')]
    if line: l.append(('s','s_add_u32 s49, s49, 512'))
    l.append(('s',f's_add_u32 m0, s11, {kg*24576}'))
    for p in range(6):
        if p==4: l+=[('s',f's_add_u32 s49, s49, {32*9216}'),('s',f's_add_u32 m0, s11, {kg*24576+4096}')]
        l.append(('m',f'buffer_load_dwordx4 v{5+(p&3)}, s[16:19], s49 offen offset:{(p&3)*1024} lds',('C',line,kg)))
    return l
def emit_now(a, items):
    for i,it in enumerate(items):
        if it[0]=='m' and i and 'm0,' in items[i-1][1]: a('s_nop 0')
        a(it[1])

def ffn(a):
    ACC3=[32,64,96,128,160]; AR=192; R=ENV('R',8); HV=224
    def HR(ks,m):
        n=4*ks+m
        return ar(4*n) if n<64 else vr(HV+4*(n-64))
    def GR(i,m,kk): return ar(32*(i%8)+16*m+4*kk)
    SOFF=0; QOFF=[36864,73728,110592,0]
    vm=VM()
    a(f"""s_lshr_b32 s30, s25, 1
    s_lshl_b32 s29, s26, 2
    s_add_u32 s29, s29, s30
    s_mul_i32 s29, s29, {9*36864}
    s_add_u32 s20, s4, {W2F_OFF:#x}
    s_addc_u32 s21, s5, 0
    s_add_u32 s20, s20, s29
    s_addc_u32 s21, s21, 0
    s_mov_b32 s22, {9*36864}
    s_mov_b32 s23, 0x20000""")
    a.srd(32,4,HNF_SZ,HNF_OFF); a.srd(36,4,GF_SZ,GF_OFF)
    a(f"""s_lshl_b32 s28, s24, 2
    s_add_u32 s28, s28, s3
    s_lshl_b32 s28, s28, 2
    s_mul_i32 s31, s3, 9216
    s_mul_i32 s40, s28, 18432
    s_mul_i32 s41, s28, 147456
    s_mul_i32 s47, s26, 36864
    s_add_u32 s41, s41, s47
    s_lshl_b32 s48, s25, 9
    s_add_u32 s41, s41, s48
    s_and_b32 s29, s25, 1
    s_lshl_b32 s29, s29, 2
    s_add_u32 s29, s29, s3
    s_lshl_b32 s48, s24, 3
    s_add_u32 s29, s29, s48
    s_mul_i32 s42, s29, {2*147456}
    s_add_u32 s42, s42, s47
    s_mov_b32 s43, 0xbfb8aa3b
    s_lshl_b32 s47, s24, 2
    s_add_u32 s47, s47, s26
    s_lshl_b32 s47, s47, 10
    s_add_u32 s47, s47, {FG_OFF}
    s_lshl_b32 s44, s25, 7
    s_add_u32 s44, s44, s47
    v_lshrrev_b32 v9, 2, v2
    v_lshl_add_u32 v9, v3, 3, v9
    v_lshlrev_b32 v9, 7, v9
    v_and_b32 v10, 1, v3
    v_bfe_u32 v11, v2, 3, 1
    v_lshl_or_b32 v10, v11, 1, v10
    v_lshl_or_b32 v9, v10, 5, v9
    v_and_b32 v10, 3, v2
    v_lshl_or_b32 v9, v10, 3, v9
    v_bfe_u32 v10, v1, 4, 1
    v_mul_u32_u24 v10, 147456, v10
    v_lshrrev_b32 v11, 5, v1
    v_lshl_add_u32 v11, v11, 4, v2
    v_lshl_add_u32 v10, v11, 4, v10
    v_add_u32 v11, {2*147456}, v10
    v_lshlrev_b32 v12, 7, v1
    v_and_b32 v13, 7, v1
    v_lshlrev_b32 v13, 7, v13
    v_add_u32 v16, 18432, v4
    v_add_u32 v17, {2*18432}, v4
    v_add_u32 v18, {3*18432}, v4
    v_add_u32 v19, 147456, v4
    v_add_u32 v20, s31, v4
    v_add_u32 v21, 65536, v4
    v_add_u32 v22, 131072, v4
    v_lshrrev_b32 v14, 1, v1
    v_and_b32 v23, 0x13, v14
    v_bfe_u32 v15, v14, 2, 1
    v_lshl_or_b32 v23, v15, 3, v23
    v_bfe_u32 v15, v14, 3, 1
    v_lshl_or_b32 v23, v15, 2, v23
    v_mul_u32_u24 v23, 9216, v23
    v_and_b32 v14, 1, v1
    v_lshl_add_u32 v23, v14, 4, v23
    v_and_b32 v24, 31, v1
    v_lshlrev_b32 v24, 3, v24
    v_lshrrev_b32 v14, 5, v1
    v_lshl_or_b32 v24, v14, 9, v24
    s_cmp_eq_u32 s46, 0
    s_cselect_b32 s86, s{KT}, s{KT+3}
    s_cselect_b32 s87, s{KT+1}, s{KT+4}
    s_cselect_b32 s88, s{KT+2}, s{KT+5}""")
    def s_dma():
        l=[]
        for z in range(9):
            if z%3==0: l+=[('s',f's_mul_i32 s49, s{86+z//3}, {96*9216}'),('s','s_add_u32 s49, s49, s99')]
            else: l.append(('s',f's_add_u32 s49, s49, {32*9216}'))
            l+=[('s',f's_add_u32 m0, s31, {SOFF+z*1024}'),('m','buffer_load_dwordx4 v23, s[16:19], s49 offen lds',('Sx',))]
        return l
    def q_dma(i):
        l=[]
        for p in range(9):
            if p%4==0: l+=[('s',f's_mov_b32 s49, {i*36864+p*1024}'),('s',f's_add_u32 m0, s31, {QOFF[i%4]+p*1024}')]
            l.append(('m',f'buffer_load_dwordx4 v20, s[20:23], s49 offen offset:{(p%4)*1024} sc1 lds',('Q',i)))
        return l
    def hloads(kg):
        l=[('s',f's_mul_i32 s50, s{KT+kg}, 3072'),('s','s_add_u32 s50, s50, s40')]
        for m in range(4):
            for i in range(3):
                l.append(('m',f'buffer_load_dwordx4 {HR(3*kg+i,m)}, v{(4,16,17,18)[m]}, s[32:35], s50 offen offset:{i*1024} sc1',('H',kg,m)))
        return l
    def gloads(i):
        l=[('s',f's_add_u32 s51, s42, {i*4096}')]
        for m in range(2):
            for kk in range(4):
                l.append(('m',f'buffer_load_dwordx4 {GR(i,m,kk)}, v{(4,19)[m]}, s[36:39], s51 offen offset:{kk*1024} sc1',('G',i)))
        return l
    def epilogue(c):
        b=ACC3[c%5]; ops=[]
        def add(it,deps): ops.append((it,deps)); return len(ops)-1
        for h in range(2):
            g=b+8*h; u=b+16+8*h; mo={}
            for j in range(8):
                p=add(('v',f'v_mul_f32 v{u+j}, v{g+j}, v{u+j}'),[])
                x=add(('v',f'v_mul_f32 v{g+j}, s43, v{g+j}'),[(p,0)])
                x=add(('t',f'v_exp_f32 v{g+j}, v{g+j}'),[(x,1)])
                x=add(('v',f'v_add_f32 v{g+j}, 1.0, v{g+j}'),[(x,1)])
                x=add(('t',f'v_rcp_f32 v{g+j}, v{g+j}'),[(x,1)])
                mo[j]=add(('v',f'v_mul_f32 v{u+j}, v{u+j}, v{g+j}'),[(x,1)])
            cv=[add(('v',f'v_cvt_pk_bf16_f32 v{g+j}, v{u+2*j}, v{u+2*j+1}'),[(mo[2*j],1),(mo[2*j+1],1),(mo[j],0)]) for j in range(4)]
            s0=add(('v',f'v_permlane16_swap_b32 v{g}, v{g+2}'),[(cv[0],2),(cv[2],2)])
            s1=add(('v',f'v_permlane16_swap_b32 v{g+1}, v{g+3}'),[(cv[1],2),(cv[3],2)])
            sa=add(('s',f's_add_u32 s{52+48*h}, s41, {c*4096}'),[(cv[0],0)])
            add(('m',f'buffer_store_dwordx4 {vr(g)}, v{10+h}, s[36:39], s{52+48*h} offen sc1',('S',c)),[(s0,1),(s1,1),(sa,0)])
        return ops
    def run(items):
        for i,it in enumerate(items):
            if it[0]=='m' and i and 'm0,' in items[i-1][1]: a('s_nop 0')
            a(it[1])
            if it[0]=='m': vm.add(it[2])
    tp(a,'ffn',1)
    a(f'v_and_b32 v15, 3, v1\nv_lshlrev_b32 v15, 7, v15\ns_lshl_b32 s48, s28, 7\ns_add_u32 s48, s48, {F2_OFF}')
    poll(a,15,'s48',14,sleep=2)
    tp(a,'ffn',2)
    run(hloads(0))
    a('s_barrier')
    groups=[]
    for kg in range(4):
        for c in range(4): groups+=[(c,kg,0),(c,kg,1)]
    for c in range(4):
        for kg in (4,5): groups+=[(c,kg,0),(c,kg,1)]
    for h in range(2):
        for c in range(4,8):
            for kg in range(3*h,3*h+3): groups+=[(c,kg,0),(c,kg,1)]
    for kg in range(6): groups+=[(8,kg,0),(8,kg,1)]
    mf=[]; done={}; cfirst={}; hfirst={}; hdead={}; frinfo=[]; first={}; last={}
    for gi,(c,kg,mat) in enumerate(groups):
        for i in range(3): frinfo.append((c,kg,mat,i))
        for m in range(4):
            for i in range(3):
                ks=3*kg+i; fr=3*gi+i; d=ACC3[c%5]+16*mat+4*m; k=len(mf)
                cc='0' if ks==0 else vr(d)
                hfirst.setdefault((kg,m),k); hdead[kg]=k; done[c]=k; cfirst.setdefault(c,k)
                first.setdefault(fr,k-i if m==0 else None); last[fr]=k
                mf.append(f'{MM} {vr(d)}, {vr(AR+4*(fr%R))}, {HR(ks,m)}, {cc}')
    N3=len(mf)
    A4=[ACC3[0],ACC3[0]+8,ACC3[0]+16,ACC3[0]+24,ACC3[4],ACC3[4]+8,ACC3[4]+16,ACC3[4]+24,HV]
    for i in range(9):
        for t in range(9):
            for hh in range(2):
                k0=len(mf)
                for m in ((0,1) if hh==0 else (1,0)):
                    for s in range(2):
                        kk=2*hh+s; fr=324+36*i+4*t+kk; d=A4[t]+4*m
                        cc='0' if (i==0 and kk==0) else vr(d)
                        first.setdefault(fr,k0); last[fr]=len(mf)
                        mf.append(f'{MM} {vr(d)}, {vr(AR+4*(fr%R))}, {GR(i,m,kk)}, {cc}')
    NM=len(mf); NFR=648
    def st4(i): return N3+72*i
    bud=[8]*NM; post=[[] for _ in range(NM)]
    waitpos=set(first[f] for f in range(NFR))
    for k in waitpos:
        if k: bud[k-1]-=4
    pool=[[25+z,None] for z in range(5)]
    def areads(fr):
        r=AR+4*(fr%R)
        if fr>=324:
            i=(fr-324)//36; ad=QOFF[i%4]+((fr-324)%36)*1024
            return [f'ds_read_b128 {vr(r)}, v{(4,21,22)[ad>>16]} offset:{ad&65535}']
        c,kg,mat,i=frinfo[fr]; pre=''
        if c==8: reg=24; off=SOFF+(mat*18+3*kg+i)*1024; step=256
        else:
            ad=kg*24576+mat*12288+i*4096; win=(ad//49152)*49152; key=(c&3,win); off=ad-win; step=512
            e=[x for x in pool if x[1]==key]
            if e: e=e[0]
            else: e=pool[0]; e[1]=key; pre=f'v_xor_b32 v{e[0]}, {win|(32*(c&3))}, v9\n'
            pool.remove(e); pool.append(e); reg=e[0]
        return [pre+f'ds_read_b64_tr_b16 v[{r}:{r+1}], v{reg} offset:{off}',f'ds_read_b64_tr_b16 v[{r+2}:{r+3}], v{reg} offset:{off+step}']
    rpos=[]
    init=[]
    for fr in range(R):
        for x in areads(fr): init.append(x); rpos.append((-1,fr))
    RSP=float(os.environ.get('RSP','2')); cur=-9
    for fr in range(R,NFR):
        for x in areads(fr):
            p=max(last[fr-R],cur+RSP); k=int(p)
            while bud[k]<4: k+=1; p=k
            cur=p; assert k<first[fr]-2,(fr,k,first[fr])
            post[k].append(('l',x)); bud[k]-=4*(1+x.count('\n')); rpos.append((k,fr))
    rfirst={}
    for k,fr in rpos: rfirst.setdefault(fr,k)
    VC=ENV('VC',8)
    cost={'s':4,'v':4,'t':8,'m':VC}
    def place(items,k,sp=1,dead=None):
        lastm=-99
        for n,it in enumerate(items):
            c=cost[it[0]]
            if it[0]=='m': k=max(k,lastm+sp)
            if it[0]=='m' and n and 'm0,' in items[n-1][1]: k+=1
            while bud[k]<c and (dead is None or k<dead-(len(items)-n)//2): k+=1
            post[k].append(it); bud[k]-=c
            if it[0]=='m': lastm=k
        return k
    def special(k,fn,c=8):
        post[k].append(('f',fn)); bud[k]-=c
    pre={}
    for (kg,m),k in hfirst.items(): pre.setdefault(k,[]).append(('H',kg,m)); bud[max(k-1,0)]-=(0 if k in waitpos else 4)
    for i in range(9): pre.setdefault(st4(i),[]).append(('G',i))
    fr_of=lambda c,kg: min(f for f in range(324) if frinfo[f][0]==c and frinfo[f][1]==kg)
    bA=rfirst[fr_of(0,3)]-3; bB=rfirst[fr_of(4,0)]-3; bC=rfirst[fr_of(4,3)]-3; bS=rfirst[fr_of(8,0)]-3
    bA2=rfirst[fr_of(0,4)]-3
    bars={bA:[('C',0,3)], 291:[], bA2:[('C',0,5)], bB:[('C',1,2)], 578:[], bC:[('C',1,5)], 866:[], 1000:[], bS:[('Sx',),('Q',0)], 1154:[], 1226:[]}
    for i in range(8): bars[st4(i)+ENV('BP4',2)]=[('Q',i+1)]; assert st4(i)+ENV('BP4',2)<rfirst[324+36*(i+1)]
    for b in bars: bud[b]-=8
    SPH=ENV('SPH',4)
    k=0
    for it,need in ((hloads(1),96),(hloads(2),192),(cell_dma(0,3),bA),(hloads(3),288),(cell_dma(0,4),bA2),(hloads(4),384),(cell_dma(0,5),bA2),(hloads(5),408)):
        k=place(it,k,2 if need==96 else SPH)
        if 'v' in X: print('S-phase load ends',k,'need',need)
        assert k<need-30,(k,need)
    k=place(cell_dma(1,0)+cell_dma(1,1)+cell_dma(1,2),max(k,293),6); assert k<bB-40,(k,bB)
    place(cell_dma(1,3)+cell_dma(1,4)+cell_dma(1,5),580,8)
    if 'now2pf' not in X:
        place([('s','s_and_b32 s48, s8, 7'),('s','s_lshl_b32 s48, s48, 2'),('s','s_add_u32 s48, s48, s3'),('s',f's_mul_i32 s48, s48, {81*128}'),
               ('m','buffer_load_dword v30, v12, s[20:23], s48 offen sc1','pf'),('m',f'buffer_load_dword v30, v12, s[20:23], s48 offen offset:{17*128} sc1','pf')],800,8)
    k=place(s_dma(),868,14); k=place(q_dma(0),k,6); assert k<bS-30,(k,bS)
    SP4=ENV('SP4',3)
    k=place(q_dma(1),1156,SP4)
    k=place(gloads(0),max(k,hdead[0]+1),SP4); k=place(gloads(1),max(k,hdead[1]+1),SP4); k=place(q_dma(2),k,SP4); k=place(gloads(2),k,SP4)
    gst={3:0,4:1,5:2,6:3,7:ENV('G7',5),8:ENV('G8',6)}; gstart={}
    for i in range(8):
        k=max(k,st4(i)+ENV('BP4',2)+1)
        if i<6: k=place(q_dma(i+3),k,SP4)
        for g in gst:
            if gst[g]==i: gstart[g]=k; k=place(gloads(g),k,SP4); assert k<st4(g)-20
    LAG=ENV('LAG',70); MARG=ENV('MARG',60); FL=ENV('FL',50)
    bl=sorted(bars)
    spos={}; allops=[]
    for c in range(9):
        base=len(allops)
        prevstore=[(i,0) for i,(cc,it,d) in enumerate(allops) if cc==c-1 and it[0]=='m']
        for it,deps in epilogue(c):
            d=[(base+i,g) for i,g in deps]
            if it[0]=='s': d+=prevstore
            allops.append((c,it,d))
    deadl={c:(cfirst[c+5]-3 if c+5<9 else (N3-3 if c in (4,5) else NM)) for c in range(9)}
    for g in gst:
        cb=max(b for b in bl if b<gstart[g]); pb=max(b for b in bl if b+MARG<=cb-FL)
        deadl[g]=min(deadl[g],pb-LAG)
    boost={c:0 for c in range(9)}
    while True:
        at={}; b2=list(bud); plc=[]; spos={}
        for c in range(9):
            for kk in range(deadl[c]-boost[c],min(deadl[c],NM),2): b2[kk]+=4
        k=done[0]+5; lo=0
        while len(at)<len(allops):
            while lo in at: lo+=1
            progress=True
            while progress:
                progress=False
                cand=[i for i in range(lo,min(lo+80,len(allops))) if i not in at and k>=done[allops[i][0]]+9
                      and all(j in at and at[j]+g<=k for j,g in allops[i][2]) and cost[allops[i][1][0]]<=b2[k]]
                if cand:
                    big=[i for i in cand if cost[allops[i][1][0]]==8]
                    i=(big or cand)[0]
                    at[i]=k; plc.append((k,allops[i][1])); b2[k]-=cost[allops[i][1][0]]; progress=True
                    if allops[i][1][0]=='m': spos[allops[i][0]]=k
            k+=1
        late=[c for c in range(9) if spos[c]>deadl[c]]
        if not late: break
        boost[late[0]]+=16
    for k,it in plc: post[k].append(it); bud[k]-=cost[it[0]]
    npub={b:sum(1 for c in range(9) if spos[c]+LAG<=b) for b in bl}
    chk={578:(12,FB_OFF,None,500)}; known={}; kn=0
    for b in bl:
        if b>=bS:
            lp=b-FL; n=max([npub[x] for x in bl if x+MARG<=lp])
            if n>kn: chk[b]=(13,'s47',n,lp); kn=n
        known[b]=kn
    assert known[1154]>=3
    for g in gst: assert known[max(b for b in bl if b<gstart[g])]>g
    if 'v' in X: print('spos',spos,'dead',deadl,'boost',boost,'bars',bl,'overflow gaps',sum(1 for b in bud if b<0),'sum',-sum(b for b in bud if b<0))
    def flagload(b):
        va,so,need,lp=chk[b]
        L=a.label('Lfl'); a(f's_cmp_lg_u32 s3, 0\ns_cbranch_scc1 {L}')
        if not isinstance(so,str): a(f's_mov_b32 s53, {so}')
        a(f'buffer_load_dword v31, v{va}, s[12:15], {so if isinstance(so,str) else "s53"} offen sc1\n{L}:')
        vm.mark(('F',b))
    for b in chk: special(chk[b][3],(lambda b=b: flagload(b)))
    prevpub=[0]
    def barrier(b):
        if b in chk:
            va,so,need,lp=chk[b]; so=so if isinstance(so,str) else 's53'
            Lok=a.label('Lok')
            a(f's_cmp_lg_u32 s3, 0\ns_cbranch_scc1 {Lok}\ns_waitcnt vmcnt({vm.since(("F",b))})'); flagcmp(a,31,need)
            a(f's_cbranch_vccz {Lok}'); poll(a,va,so,31,need,sleep=1); a(f'{Lok}:')
        n=npub[b]; c0=prevpub[0]; tags=list(bars[b])
        if n>c0: tags.append(('S',n-1))
        if tags: a(f's_waitcnt vmcnt({min(vm.n_after(t) for t in tags)})')
        a('s_barrier')
        if n>c0:
            L=a.label('Lpub'); a(f's_cmp_lg_u32 s3, 1\ns_cbranch_scc1 {L}'); setflag(a,'s44',14,add=n); a(f'{L}:')
            if 'nogpf' not in X:
                for c in range(c0,n):
                    a(f's_add_u32 s48, s41, {c*4096}')
                    for h in range(2): a(f'buffer_load_dword v30, v{10+h}, s[36:39], s48 offen sc1'); vm.add('pf')
        if b==578:
            L=a.label('Lep'); a(f's_or_b32 s48, s2, s3\ns_cmp_lg_u32 s48, 0\ns_cbranch_scc1 {L}\ns_mov_b32 s48, {EP_OFF}'); setflag(a,'s48',14); a(f'{L}:')
        prevpub[0]=n
    HP=64
    fin=[('s',x) for x in f"""s_add_u32 s32, s4, {HF_OFF:#x}
        s_addc_u32 s33, s5, 0
        s_mul_i32 s48, s29, {2*18432}
        s_mul_i32 s50, s30, 9
        s_add_u32 s50, s50, 1
        s_lshr_b32 s50, s50, 1
        s_add_u32 s50, s50, s26
        s_lshl_b32 s50, s50, 10
        s_add_u32 s50, s50, s48
        s_lshr_b32 s53, s30, 1
        s_mul_i32 s53, s53, 9216
        s_add_u32 s48, s48, s53
        s_and_b32 s53, s30, 1
        s_lshl_b32 s53, s53, 9
        s_add_u32 s48, s48, s53
        s_add_u32 s48, s48, 4096
        v_lshrrev_b32 v14, 1, v3
        v_lshl_add_u32 v14, v14, 4, v2
        v_lshlrev_b32 v14, 4, v14
        v_and_b32 v15, 1, v3
        v_lshl_add_u32 v14, v15, 3, v14
        v_add_u32 v15, 18432, v14""".split('\n')]
    fin[0]=('s',fin[0][1]+'\n'+fin[1][1]); del fin[1]
    fin+=[('m',f'buffer_load_dwordx4 {vr(HP)}, v4, s[32:35], s50 offen sc1','h'),('m',f'buffer_load_dwordx4 {vr(HP+4)}, v16, s[32:35], s50 offen sc1','h'),
          ('m',f'buffer_load_dwordx2 {vr(HP+8,2)}, v14, s[32:35], s48 offen sc1','h'),('m',f'buffer_load_dwordx2 {vr(HP+10,2)}, v15, s[32:35], s48 offen sc1','h')]
    kf=place(fin,st4(7)+ENV('BP4',2)+2,2); assert kf<st4(8)
    PKD=96
    fin2=[('s',x) for x in f"""s_add_u32 s16, s4, {PART_OFF:#x}
        s_mov_b32 s18, {PART_SZ}
        s_lshr_b32 s48, s29, 2
        s_lshl_b32 s48, s48, 2
        s_add_u32 s48, s48, s30
        s_lshl_b32 s48, s48, 4
        s_add_u32 s48, s48, s3
        s_lshl_b32 s49, s26, 2
        s_add_u32 s49, s49, s48
        s_mul_i32 s50, s49, 7168
        s_add_u32 s51, s50, 4096
        v_lshlrev_b32 v5, 3, v1""".split('\n')]
    fin2[0]=('s',fin2[0][1]+'\ns_addc_u32 s17, s5, 0')
    kf=place(fin2,kf+1,1); assert kf<st4(8)+18
    tail=[]
    for pr in range(4):
        it=[]
        for m in range(2):
            o=PKD+8*pr+4*m
            for tt in range(2 if pr<3 else 1):
                d=A4[2*pr+tt]+4*m
                it+=[('v',f'v_cvt_pk_bf16_f32 v{o+2*tt}, v{d}, v{d+1}'),('v',f'v_cvt_pk_bf16_f32 v{o+2*tt+1}, v{d+2}, v{d+3}')]
            off=(2*pr+m)*1024
            if pr<3: it.append(('m',f'buffer_store_dwordx4 {vr(o)}, v4, s[16:19], s{50 if off<4096 else 51} offen offset:{off%4096} sc1','P'))
            else: it.append(('m',f'buffer_store_dwordx2 {vr(o,2)}, v5, s[16:19], s51 offen offset:{2048+512*m} sc1','P'))
        kf=place(it,max(kf,st4(8)+8*(2*pr+(2 if pr<3 else 1))+7),1,NM-1)
    for x in init: a(x)
    tpk=[0,576,N3-144,N3,N3+216,N3+432]
    for k,txt in enumerate(mf):
        if TRACE=='ffn' and k in tpk: a.tp(3+tpk.index(k))
        if TRACE=='sg' and k%144==0 and k//144<13: a.tp(k//144)
        w=[]
        if k in pre: w.append(f'vmcnt({min(vm.n_after(t) for t in pre[k])})')
        if k in waitpos:
            fmax=max(f for f in range(NFR) if first[f]==k)
            w.append(f'lgkmcnt({sum(1 for p,f in rpos if p<k and f>fmax)})')
        if w: a('s_waitcnt '+' '.join(w))
        a(txt)
        if k in bars: barrier(k)
        for it in post[k]:
            if it[0]=='f': it[1]()
            else:
                a(it[1])
                if it[0]=='m': vm.add(it[2])
    tp(a,'ffn',9)
    a(f"""s_load_dwordx2 s[24:25], s[0:1], {KA_OUT}
    s_lshl_b32 s49, s49, 7
    s_add_u32 s49, s49, {FR_OFF}
    s_lshl_b32 s52, s48, 7
    s_add_u32 s52, s52, {FR_OFF}
    v_and_b32 v8, 3, v1
    v_lshlrev_b32 v8, 9, v8
    s_mov_b32 s53, 0xffff0000
    s_waitcnt vmcnt(0)""")
    tp(a,'ffn',10)
    setflag(a,'s49',14)
    def own(m,r):
        return (A4[7+(r>>1)]+4*m+2*(r&1)) if r<4 else (A4[6]+4*m+2*(r-4))
    def acc(src,m,r):
        d=own(m,r); t=14 if (r&1) else 6
        a(f'v_lshlrev_b32 v{t}, 16, v{src}\nv_and_b32 v{t+1}, s53, v{src}\nv_pk_add_f32 v[{d}:{d+1}], v[{d}:{d+1}], v[{t}:{t+1}]')
    for m in range(2):
        for r in range(4): acc(HP+4*m+r,m,r)
        for r in range(2): acc(HP+8+2*m+r,m,4+r)
    a(f"""s_lshr_b32 s40, s29, 1
    s_and_b32 s41, s29, 1
    s_sub_u32 s42, 64, s40
    s_cmp_eq_u32 s40, 0
    s_cselect_b32 s42, 32, s42
    s_cmp_eq_u32 s41, 0
    s_cselect_b32 s42, s40, s42
    s_mul_i32 s42, s42, 1152
    s_mul_i32 s40, s30, 288
    s_add_u32 s42, s42, s40
    s_and_b32 s40, s30, 1
    s_lshl_b32 s41, s40, 5
    s_add_u32 s41, s41, s42
    s_lshl_b32 s43, s26, 6
    s_add_u32 s41, s41, s43
    s_xor_b32 s40, s40, 1
    s_lshl_b32 s40, s40, 8
    s_add_u32 s40, s40, s42
    s_add_u32 s42, s40, {1024*1152}
    s_add_u32 s43, s41, {1024*1152}
    v_lshrrev_b32 v9, 2, v1
    v_and_b32 v10, 3, v1
    v_lshl_add_u32 v11, v10, 4, v9
    v_lshlrev_b32 v11, 4, v11
    s_lshl_b32 s44, s3, 11
    s_add_u32 s44, s44, {4*36864}
    v_add_u32 v11, s44, v11
    v_add_u32 v12, s44, v4
    v_mul_u32_u24 v9, {64*1152}, v9
    v_lshl_add_u32 v9, v10, 4, v9
    v_mul_u32_u24 v10, {64*1152}, v2
    v_lshl_add_u32 v10, v3, 3, v10
    v_cmp_eq_u32 s[34:35], s26, v3
    s_mul_i32 s50, s48, 7168
    s_waitcnt lgkmcnt(0)""")
    a.srd(20,24,XSZ)
    poll(a,8,'s52',14,sleep=1)
    tp(a,'ffn',11)
    RC=128
    for d in range(1,4):
        a(f"""s_add_u32 s49, s26, {d}
        s_and_b32 s49, s49, 3
        s_mul_i32 s49, s49, {4*7168}
        s_add_u32 s49, s49, s50
        s_add_u32 s44, s49, {(3-d)*2048}
        s_add_u32 s49, s49, 6144""")
        b=RC+12*(d-1) if d<3 else 96
        for m in range(2): a(f'buffer_load_dwordx4 {vr(b+4*m)}, v4, s[16:19], s44 offen offset:{1024*m} sc1')
        for m in range(2): a(f'buffer_load_dwordx2 {vr(b+8+2*m,2)}, v5, s[16:19], s49 offen offset:{512*m} sc1')
    for d in range(1,4):
        b=RC+12*(d-1) if d<3 else 96
        a(f's_waitcnt vmcnt({4*(3-d)})')
        for m in range(2):
            for r in range(4): acc(b+4*m+r,m,r)
            for r in range(2): acc(b+8+2*m+r,m,4+r)
    for m in range(2):
        for r in range(6): a(f'v_cvt_pk_bf16_f32 v{HP+8*m+r}, v{own(m,r)}, v{own(m,r)+1}')
        a(f'ds_write_b128 v12, {vr(HP+8*m)} offset:{1024*m}')
    a(f"""ds_read_b128 v[80:83], v11
    ds_read_b128 v[84:87], v11 offset:1024
    s_mov_b64 exec, s[34:35]
    buffer_store_dwordx2 v[{HP+4}:{HP+5}], v10, s[20:23], s40 offen
    buffer_store_dwordx2 v[{HP+12}:{HP+13}], v10, s[20:23], s42 offen
    s_mov_b64 exec, -1
    s_waitcnt lgkmcnt(1)
    buffer_store_dwordx4 v[80:83], v9, s[20:23], s41 offen
    s_waitcnt lgkmcnt(0)
    buffer_store_dwordx4 v[84:87], v9, s[20:23], s43 offen""")
    tp(a,'ffn',12)

def build():
    a=Asm(); name=NAME+'_kernel'
    a.begin(name)
    a(f's_cmp_ge_u32 s2, 256\ns_cbranch_scc1 Lend')
    if STAMPS: a.stamp_start()
    a(f'''s_load_dwordx2 s[4:5], s[0:1], {KA_WS}
    s_load_dwordx8 s[36:43], s[0:1], 0
    s_load_dwordx2 s[44:45], s[0:1], {KA_SD}
    s_load_dwordx2 s[52:53], s[0:1], {KA_WD}
    v_lshrrev_b32 v2, 6, v0
    v_and_b32 v1, 63, v0
    v_lshlrev_b32 v4, 4, v1
    v_readfirstlane_b32 s3, v2
    v_and_b32 v2, 15, v1
    v_lshrrev_b32 v3, 4, v1
    s_and_b32 s7, s2, 7
    s_lshr_b32 s8, s2, 3
    s_lshl_b32 s24, s8, 2
    s_add_u32 s24, s24, s3
    s_lshl_b32 s25, s8, 7
    s_lshl_b32 s26, s3, 3
    s_add_u32 s26, s26, s7
    s_mul_i32 s26, s26, 1152
    s_add_u32 s25, s25, s26
    s_sub_u32 s26, s24, 36
    s_sub_u32 s27, s24, 77
    s_waitcnt lgkmcnt(0)
    s_load_dword s10, s[4:5], {EP_OFF}''')
    if 'nowarm' not in X:
        a(f"""s_cmp_lt_u32 s24, 77
        s_cselect_b32 s26, s26, s27
        s_cselect_b32 s16, s42, s44
        s_cselect_b32 s17, s43, s45
        s_lshl_b32 s26, s26, 13
        s_mov_b32 s18, {289*1152}
        s_mov_b32 s27, 128
        s_cmp_lt_u32 s24, 36
        s_cselect_b32 s16, s36, s16
        s_cselect_b32 s17, s37, s17
        s_cselect_b32 s18, {XSZ}, s18
        s_cselect_b32 s25, s25, s26
        s_cselect_b32 s27, 36864, s27
        s_mov_b32 s19, 0x20000
        v_mul_lo_u32 v5, v1, s27
        buffer_load_dword v30, v5, s[16:19], s25 offen""")
    a.srd(12,4,FL_SZ)
    a('s_and_b32 s23, s8, 3\ns_cmp_eq_u32 s23, 3\ns_cbranch_scc1 Lrolec')
    phase1(a)
    def fill():
        ffn_setup(a)
        for kg in range(3): emit_now(a,cell_dma(0,kg))
    def warm(first,second):
        a('v_min_u32 v14, 47, v1\nv_mul_u32_u24 v14, 9216, v14')
        for line,kg in first+second:
            a(f's_mul_i32 s49, s{KT+kg}, {96*9216}\ns_add_u32 s49, s49, s98\nbuffer_load_dword v30, v14, s[16:19], s49 offen offset:{512*line}')
    a('s_bitcmp1_b32 s8, 1\ns_cbranch_scc1 Lroleb')
    phase2(a,fill)
    a('s_branch Lffn\nLroleb:')
    fill()
    if 'nobpf' not in X: warm([(0,3),(0,4)],[(1,0),(1,1)])
    a('s_branch Lffn')
    a(f"""Lrolec:
    s_lshr_b32 s23, s8, 2
    s_lshl_b32 s23, s23, 3
    s_add_u32 s23, s23, s7
    s_lshl_b32 s22, s3, 6
    s_add_u32 s22, s22, s23
    s_mul_i32 s11, s3, 24576""")
    prep_w2(a)
    a(f"""s_lshl_b32 s101, s23, 7
    s_add_u32 s101, s101, {FB_OFF}
    s_waitcnt lgkmcnt(0)
    s_add_u32 s6, s10, 16
    s_barrier""")
    tp(a,'fn',0)
    ffn_setup(a)
    emit_now(a,cell_dma(0,2))
    a('s_waitcnt vmcnt(6)\ns_barrier\ns_cmp_lg_u32 s3, 0\ns_cbranch_scc1 Lcf')
    setflag(a,'s101',14)
    a('Lcf:')
    tp(a,'fn',1)
    for kg in (1,0): emit_now(a,cell_dma(0,kg))
    if 'nobpf' not in X: warm([(0,5)],[(1,2)])
    a('Lffn:')
    tp(a,'fn',12); tp(a,'ffn',0)
    ffn(a)
    if TRACE: a.trace_end(0,13,tmp=16)
    if STAMPS: a.stamp_end(0,tmp=16)
    a('Lend:\ns_endpgm')
    a.end(name,(256,1,1),256,163840,512,sgpr=102,accum=256)
    a.launch=['; @launch grid=(256,1,1) block=(256,1,1) lds=163840']
    return a

if __name__=='__main__':
    a=build()
    hdr=open(os.path.join(os.path.dirname(os.path.abspath(__file__)),'header.txt')).read()
    open(sys.argv[1],'w').write(a.text(hdr))
```
